```python
import torch

def _softmax(x, axis=-1):
    return torch.softmax(x, dim=axis)
def _gelu(x):
    return torch.nn.functional.gelu(x, approximate="tanh")
def _silu(x):
    return torch.nn.functional.silu(x)
def _sigmoid(x):
    return torch.sigmoid(x)
def _layernorm(x, axis=-1, eps=1e-5):
    m = x.mean(dim=axis, keepdim=True)
    v = x.var(dim=axis, keepdim=True, unbiased=False)
    return (x - m) / torch.sqrt(v + eps)
def _scatter_add(tgt, idx, src, axis=0):
    return tgt.clone().index_add_(axis, idx, src)
def _segment_sum(src, seg, n):
    out = torch.zeros((n,) + src.shape[1:], dtype=src.dtype)
    return out.index_add_(0, seg, src)
def _pad(x, pw):
    flat = tuple(v for pair in reversed(pw) for v in pair)
    return torch.nn.functional.pad(x, flat)

kernel_name = 'sequential_preLN__linear_attn_block__mixer_token_mlp__prompt'

def setup_inputs():

    _w = (lambda a: (lambda t: t.to(torch.bfloat16) if t.is_floating_point() else t)(torch.as_tensor(a)))
    def _A_setup():
        B, S, D = 1, 2048, 640
        return {
            "x": _w((lambda *s: torch.randn(*s, dtype=torch.bfloat16) * 0.05)(B, S, D)),
            "wqkv": _w((lambda *s: torch.randn(*s, dtype=torch.bfloat16) * 0.05)(D, 3 * D)),
            "wo": _w((lambda *s: torch.randn(*s, dtype=torch.bfloat16) * 0.05)(D, D)),
        }
    _A_in = _A_setup()

    def _B_setup():
        B, S, D, F = 1, 2048, 640, 1536
        return {
            "x": _w((lambda *s: torch.randn(*s, dtype=torch.bfloat16) * 0.05)(B, S, D)),
            "w1": _w((lambda *s: torch.randn(*s, dtype=torch.bfloat16) * 0.2)(S, F) * (S ** -0.5)),
            "b1": _w((lambda *s: torch.randn(*s, dtype=torch.bfloat16) * 3.2)(F) * 0.02),
            "w2": _w((lambda *s: torch.randn(*s, dtype=torch.bfloat16) * 0.4)(F, S) * (F ** -0.5)),
            "b2": _w((lambda *s: torch.randn(*s, dtype=torch.bfloat16) * 0.8)(S) * 0.02),
        }
    _B_in = _B_setup()

    return {
        "A_x": _A_in["x"],
        "A_wqkv": _A_in["wqkv"],
        "A_wo": _A_in["wo"],
        "B_x": _B_in["x"],
        "B_w1": _B_in["w1"],
        "B_b1": _B_in["b1"],
        "B_w2": _B_in["w2"],
        "B_b2": _B_in["b2"],
    }

def reference(A_x, A_wqkv, A_wo, B_x, B_w1, B_b1, B_w2, B_b2):
    def _A_ref(x, wqkv, wo):
        B, S, D = x.shape
        H = 32; Dh = D // H
        qkv = (lambda x, *d: x.permute(*d))((x @ wqkv).reshape(B, S, 3, H, Dh), 2, 0, 3, 1, 4)
        q, k, v = qkv[0], qkv[1], qkv[2]
        phi = lambda t: torch.where(t > 0, t + 1, torch.exp(t)) + 1e-6
        pq, pk = phi(q), phi(k)
        kv = torch.einsum("bhsd,bhse->bhde", pk, v)
        z = torch.einsum("bhsd->bhd", pk)
        num = torch.einsum("bhqd,bhde->bhqe", pq, kv)
        den = torch.einsum("bhqd,bhd->bhq", pq, z)[..., None] + 1e-6
        o = num / den
        return (lambda x, *d: x.permute(*d))(o, 0, 2, 1, 3).reshape(B, S, D) @ wo

    def _B_ref(x, w1, b1, w2, b2):
        B, S, D = x.shape
        h = _layernorm(x, axis=-1)
        u = torch.einsum("bsd,sf->bdf", h, w1) + b1
        u = _gelu(u)
        y = torch.einsum("bdf,fs->bds", u, w2) + b2
        return (lambda x, *d: x.permute(*d))(y, 0, 2, 1)

    x = A_x
    h = x + _A_ref(_layernorm(x, axis=-1), A_wqkv, A_wo)
    h2 = h + _B_ref(_layernorm(h, axis=-1), B_w1, B_b1, B_w2, B_b2)
    return h2
```

```python
import re

TRANS = ("v_exp_f32", "v_log_f32", "v_rcp_f32", "v_rsq_f32", "v_sqrt_f32", "v_sin_f32", "v_cos_f32", "v_rcp_iflag_f32")
_reg_re = re.compile(r"^(-|\|)?(abs\()?([vas])(?:(\d+)|\[(\d+):(\d+)\])\)?\|?$")


def regs_of(op):
    op = op.strip()
    if op in ("vcc", "vcc_lo", "vcc_hi"):
        return {("vcc", 0)}
    if op in ("exec", "exec_lo", "exec_hi"):
        return {("exec", 0)}
    if op == "m0":
        return {("m0", 0)}
    m = _reg_re.match(op)
    if not m:
        return set()
    k = m.group(3)
    if m.group(4) is not None:
        return {(k, int(m.group(4)))}
    return {(k, i) for i in range(int(m.group(5)), int(m.group(6)) + 1)}


class Ins:
    __slots__ = ("text", "kind", "tag", "opt", "mn", "wr", "rd", "cls", "extra")

    def __init__(self, text, kind="ins", tag=None, opt=False):
        self.text = text
        self.kind = kind
        self.tag = tag
        self.opt = opt
        self.mn = None
        self.wr = set()
        self.rd = set()
        self.cls = None
        self.extra = {}
        if kind == "ins":
            self.parse()

    def parse(self):
        t = self.text.split(";")[0].strip()
        sp = t.split(None, 1)
        mn = sp[0]
        self.mn = mn
        rest = sp[1] if len(sp) > 1 else ""
        ops, cur, d = [], "", 0
        for ch in rest:
            if ch in "[(":
                d += 1
            if ch in "])":
                d -= 1
            if ch == "," and d == 0:
                ops.append(cur.strip())
                cur = ""
            else:
                cur += ch
        if cur.strip():
            ops.append(cur.strip())
        mods = ""
        if ops:
            last = ops[-1].split(None, 1)
            ops[-1] = last[0]
            mods = last[1] if len(last) > 1 else ""
        R = [regs_of(o) for o in ops]
        base = re.sub(r"_(e32|e64|dpp|sdwa)$", "", mn)
        if mn.startswith("v_mfma"):
            self.cls = "mfma"
            self.wr = R[0]
            self.rd = R[1] | R[2] | R[3]
            self.extra = dict(a=R[1], b=R[2], c=R[3], passes=8 if "32x32" in mn else 4)
        elif mn.startswith("v_"):
            self.cls = "valu"
            self.extra["trans"] = base in TRANS
            self.extra["dpp"] = mn.endswith("_dpp") or "row_" in mods or "quad_perm" in mods
            self.extra["perm"] = base.startswith("v_permlane")
            self.extra["rdlane"] = base in ("v_readfirstlane_b32", "v_readlane_b32")
            if base == "v_nop":
                pass
            elif self.extra["perm"]:
                self.wr = R[0] | R[1]
                self.rd = R[0] | R[1]
            else:
                self.wr = set(R[0])
                srcs = R[1:]
                if base in ("v_add_co_u32", "v_sub_co_u32", "v_addc_co_u32", "v_subb_co_u32", "v_mad_u64_u32"):
                    self.wr |= R[1]
                    srcs = R[2:]
                for s in srcs:
                    self.rd |= s
                if base in ("v_fmac_f32", "v_dot2c_f32_bf16", "v_pk_fmac_f16") or self.extra["dpp"]:
                    self.rd |= R[0]
                if base.startswith("v_cmpx"):
                    self.wr |= {("exec", 0)}
        elif mn.startswith("buffer_") or mn.startswith("global_"):
            self.cls = "vmem"
            lds = bool(re.search(r"\blds\b", mods)) or "load_lds" in mn
            self.extra["lds"] = lds
            isload = "_load" in mn
            isatomic = "_atomic" in mn
            allr = set()
            for s in R:
                allr |= s
            if isload and not lds:
                self.wr = R[0]
                for s in R[1:]:
                    self.rd |= s
            else:
                self.rd = allr
                if isatomic and "sc0" in mods:
                    self.wr = R[0]
            if lds:
                self.rd |= {("m0", 0)}
            if "_store" in mn and ("x4" in mn or "x3" in mn):
                self.extra["widedata"] = R[0] if mn.startswith("buffer_") else R[1]
        elif mn.startswith("ds_"):
            self.cls = "ds"
            if mn.startswith("ds_read") or "permute" in mn or "swizzle" in mn:
                self.wr = R[0]
                for s in R[1:]:
                    self.rd |= s
            else:
                for s in R:
                    self.rd |= s
        elif mn.startswith("s_load") or mn.startswith("s_memtime") or mn.startswith("s_memrealtime") or mn.startswith("s_buffer_load"):
            self.cls = "smem"
            self.wr = R[0]
            for s in R[1:]:
                self.rd |= s
        elif mn.startswith("s_"):
            self.cls = "salu"
            if mn.startswith("s_cmp") or mn.startswith("s_cbranch") or mn in ("s_branch", "s_barrier", "s_waitcnt", "s_nop", "s_sleep", "s_setprio", "s_endpgm", "s_bitcmp0_b32", "s_bitcmp1_b32"):
                for s in R:
                    self.rd |= s
            else:
                self.wr = set(R[0]) if R else set()
                for s in R[1:]:
                    self.rd |= s
                if "saveexec" in mn:
                    self.wr |= {("exec", 0)}
        else:
            raise ValueError("unknown instruction: " + self.text)

    def states(self):
        if self.kind != "ins":
            return 0
        if self.mn == "s_nop":
            return int(self.text.split()[1], 0) + 1
        return 1


def vec(rs):
    return {r for r in rs if r[0] in ("v", "a")}


def sca(rs):
    return {r for r in rs if r[0] in ("s", "vcc")}


def need(p, c):
    n = 0
    if p.cls == "valu":
        pw = vec(p.wr)
        if c.cls == "mfma" and pw & c.rd:
            n = max(n, 2)
        if c.cls == "valu":
            if c.extra["perm"] and pw & c.rd:
                n = max(n, 2)
            if c.extra["dpp"] and pw & c.rd:
                n = max(n, 2)
            if c.extra["rdlane"] and pw & c.rd:
                n = max(n, 1)
            if p.extra["trans"] and not c.extra["trans"] and pw & c.rd:
                n = max(n, 1)
            if sca(p.wr) & c.rd:
                n = max(n, 4 if c.extra["rdlane"] else 2)
        if p.extra["trans"] and c.cls in ("ds", "vmem") and pw & c.rd:
            n = max(n, 1)
        if c.cls in ("vmem", "smem") and sca(p.wr) & c.rd:
            n = max(n, 5)
        if c.cls == "salu" and sca(p.wr) & c.rd:
            n = max(n, 1)
        if c.cls == "salu" and c.mn in ("s_cbranch_vccz", "s_cbranch_vccnz") and ("vcc", 0) in p.wr:
            n = max(n, 1)
    elif p.cls == "mfma":
        big = p.extra["passes"] == 8
        if c.cls == "mfma":
            if p.wr & (c.extra["a"] | c.extra["b"]):
                n = max(n, 12 if big else 8)
            if p.wr & c.extra["c"]:
                if not (p.wr == c.extra["c"] and p.mn == c.mn):
                    n = max(n, 10 if big else 6)
            if p.wr & c.wr and not (p.wr & c.extra["c"]):
                n = max(n, 10 if big else 6)
        elif c.cls in ("valu", "vmem", "ds"):
            if p.wr & (c.rd | c.wr):
                n = max(n, 12 if big else 8)
            if c.cls == "valu" and p.extra["c"] & c.wr:
                n = max(n, 7 if big else 3)
    elif p.cls == "salu":
        if ("m0", 0) in p.wr and c.cls == "vmem" and c.extra["lds"]:
            n = max(n, 1)
    elif p.cls == "vmem":
        wd = p.extra.get("widedata")
        if wd and (wd & c.wr):
            n = max(n, 2)
    return n


class Prog:
    def __init__(self):
        self.ins = []
        self._lab = 0

    def __call__(self, text, tag=None, opt=False):
        for line in text.split("\n"):
            line = line.strip()
            if not line:
                continue
            self.ins.append(Ins(line, "ins", tag, opt))

    def label(self, name):
        self.ins.append(Ins(name, "label"))

    def newlabel(self, base):
        Prog._ctr = getattr(Prog, "_ctr", 0) + 1
        return f"L_{base}_{Prog._ctr}"

    def comment(self, t):
        self.ins.append(Ins(t, "comment"))

    def raw(self, t):
        self.ins.append(Ins(t, "raw"))

    def waitvm(self, tag):
        self.ins.append(Ins("", "waitvm", tag))

    def waitlg(self, tag):
        self.ins.append(Ins("", "waitlg", tag))

    def extend(self, other):
        self.ins.extend(other.ins)


def interleave(main, fill, positions=None, start=0, end=None):
    idx = [i for i, x in enumerate(main.ins) if x.kind == "ins" and x.cls == "mfma" and not x.opt]
    if end is None:
        end = len(idx)
    n = len(fill)
    out = Prog()
    if n == 0:
        out.extend(main)
        return out
    if positions is None:
        span = end - start
        positions = [start + (k * span) // n for k in range(n)]
    at = {}
    for p, f in zip(positions, fill):
        at.setdefault(idx[min(p, len(idx) - 1)], []).append(f)
    for i, x in enumerate(main.ins):
        out.ins.append(x)
        for f in at.get(i, []):
            out.extend(f)
    return out


def finalize(prog, verbose=False):
    out = []
    vm = []
    lg = []
    smem_out = False
    nnop = 0

    def emit(x):
        nonlocal nnop
        if x.kind == "ins":
            req = 0
            dist = 0
            for p in reversed(out):
                if dist >= 20:
                    break
                if p.kind == "ins":
                    r = need(p, x)
                    if r - dist > req:
                        req = r - dist
                    if not (p.opt and not x.opt):
                        dist += p.states()
            while req > 0:
                k = min(req, 16)
                nop = Ins(f"s_nop {k-1}")
                out.append(nop)
                nnop += 1
                req -= k
        out.append(x)

    for x in prog.ins:
        if x.kind == "waitvm":
            tags = x.tag if isinstance(x.tag, (list, tuple, set)) else [x.tag]
            last = -1
            for i, (t, o) in enumerate(vm):
                if t in tags:
                    last = i
            if last >= 0:
                n = sum(1 for (t, o) in vm[last + 1:] if not o)
                n = min(n, 63)
                emit(Ins(f"s_waitcnt vmcnt({n})"))
                vm = vm[last + 1:]
            continue
        if x.kind == "waitlg":
            tags = x.tag if isinstance(x.tag, (list, tuple, set)) else [x.tag]
            last = -1
            for i, (t, o) in enumerate(lg):
                if t in tags:
                    last = i
            if last >= 0:
                n = sum(1 for (t, o) in lg[last + 1:] if not o)
                n = min(n, 15)
                if smem_out:
                    n = 0
                emit(Ins(f"s_waitcnt lgkmcnt({n})"))
                if n == 0:
                    lg = []
                    smem_out = False
                else:
                    lg = lg[last + 1:]
            continue
        if x.kind == "ins":
            if x.mn == "s_waitcnt":
                m = re.search(r"vmcnt\((\d+)\)", x.text)
                if m and int(m.group(1)) == 0 and not x.opt:
                    vm = []
                m = re.search(r"lgkmcnt\((\d+)\)", x.text)
                if m and int(m.group(1)) == 0 and not x.opt:
                    lg = []
                    smem_out = False
            if x.cls == "vmem":
                vm.append((x.tag, x.opt))
            if x.cls == "ds":
                lg.append((x.tag, x.opt))
            if x.cls == "smem":
                lg.append((x.tag, x.opt))
                smem_out = True
        emit(x)
    lines = []
    for x in out:
        if x.kind == "label":
            lines.append(x.text + ":")
        elif x.kind == "comment":
            lines.append("    ; " + x.text)
        else:
            lines.append("    " + x.text)
    if verbose:
        n = sum(1 for x in out if x.kind == "ins")
        print(f"instructions: {n}, inserted nops: {nnop}")
    return "\n".join(lines), out


def check_pending(out):
    vm = []
    lg = []
    probs = []
    for k, x in enumerate(out):
        if x.kind != "ins":
            continue
        if x.mn == "s_waitcnt":
            if x.opt:
                if "vmcnt(0)" in x.text:
                    vm = [e for e in vm if not e.opt]
                if "lgkmcnt(0)" in x.text:
                    lg = [e for e in lg if not e.opt]
                continue
            m = re.search(r"vmcnt\((\d+)\)", x.text)
            if m:
                n = int(m.group(1))
                keep = []
                cnt = 0
                for e in reversed(vm):
                    if cnt >= n:
                        break
                    keep.append(e)
                    if not e.opt:
                        cnt += 1
                vm = list(reversed(keep)) if n > 0 else []
            m = re.search(r"lgkmcnt\((\d+)\)", x.text)
            if m:
                n = int(m.group(1))
                keep = []
                cnt = 0
                for e in reversed(lg):
                    if cnt >= n:
                        break
                    keep.append(e)
                    if not e.opt:
                        cnt += 1
                lg = list(reversed(keep)) if n > 0 else []
            continue
        for e in vm + lg:
            if e.wr & (x.rd | x.wr):
                if e.cls == x.cls and not (e.wr & x.rd) and e.cls != "smem":
                    continue
                probs.append((k, x.text, e.text))
        if x.cls == "vmem":
            vm.append(x)
        if x.cls in ("ds", "smem"):
            lg.append(x)
    return probs
```

```python
import sys, struct, math
from asmlib import *

KNAME = "sequential_preLN__linear_attn_block__mixer_token_mlp__prompt_kernel"

WS_CA, WS_CB, WS_CD, WS_CE = 0, 8192, 16384, 20480
WS_STAT = 0x10000
WS_KVP = 0x100000
WS_O = 0x200000
WS_HN = 0x500000
WS_U = 0x800000
WS_TS = 0xC00000
WS_BYTES = 0x1000000
L_W = 0
L_RING = 102400
RSTR = 12928
L_MISC = 154112
L_CS = L_MISC
L_CSQ = L_MISC + 2048
L_RS = L_MISC + 4096
L_RSD = L_MISC + 4608
L_KVT = L_MISC + 5120
L_ZERO = L_MISC + 7168
L_RED1 = 102400 - 12288
LDS_BYTES = 163840

SX, SWQ, SWO, SW1, SW2, SOUT, SWS = 4, 8, 12, 16, 20, 24, 28
SB1, SB2, SDBG = 32, 34, 36
sW, sRB, sHP, sST, sDJ, sDT, sFT, sI = 38, 39, 40, 41, 42, 43, 44, 45
sT0, sT1, sT2, sT3, sT4, sT5 = 46, 47, 48, 49, 50, 51
sRING, sXO, sWO_, sPB, sROT, sCNT = 52, 53, 54, 55, 56, 57
sC0 = 58
sM0, sM1 = 60, 62
sTAB = 64
sTS = 80
sM2, sM3, sM4 = 82, 84, 86
sA0, sA1, sA2, sA3, sA4, sA5 = 88, 89, 90, 91, 92, 93


def f2u(x):
    return "0x%08x" % struct.unpack("<I", struct.pack("<f", x))[0]


def srd(n):
    return f"s[{n}:{n+3}]"


def vr(n, k=1):
    return f"v{n}" if k == 1 else f"v[{n}:{n+k-1}]"


def ar(n, k=1):
    return f"a{n}" if k == 1 else f"a[{n}:{n+k-1}]"


def sp(n):
    return f"s[{n}:{n+1}]"


MF = "v_mfma_f32_16x16x32_bf16"
MF16 = "v_mfma_f32_16x16x16_bf16"
LOG2E = 1.4426950408889634


class Gen:
    def __init__(self, stamps=False, stop=None, rot1=(1, 3, 0, 0), rot3=3, rot4=0, w1_early=8):
        self.p = Prog()
        self.stamps = stamps
        self.stop = stop
        self.nst = 0
        self.stnames = []
        self.rot1 = rot1
        self.rot3 = rot3
        self.rot4 = rot4
        self.w1_early = w1_early

    def stamp(self, name, p=None):
        if not self.stamps:
            return
        p = p or self.p
        p(f"s_memrealtime {sp(sTS)}")
        p("s_waitcnt lgkmcnt(0)")
        p(f"v_writelane_b32 v255, s{sTS}, {self.nst}")
        self.stnames.append(name)
        self.nst += 1

    def poll(self, voff, soff, target, vt, name):
        p = self.p
        L = p.newlabel("poll_" + name)
        Ld = p.newlabel("polled_" + name)
        p(f"s_mov_b32 s{sCNT}, 0")
        p.label(L)
        p(f"buffer_load_dword v{vt}, v{voff}, {srd(SWS)}, s{soff} offen sc1")
        p(f"s_add_u32 s{sCNT}, s{sCNT}, 1")
        p("s_waitcnt vmcnt(0)")
        p(f"v_cmp_gt_u32 vcc, {target}, v{vt}")
        p(f"s_bitcmp1_b32 s{sCNT}, 19")
        p(f"s_cbranch_scc1 {Ld}")
        p(f"s_cbranch_vccnz {L}")
        p.label(Ld)

    def signal(self, soff, vone, p=None, tag=None):
        p = p or self.p
        p("s_mov_b64 exec, 1")
        p(f"buffer_atomic_add v{vone}, off, {srd(SWS)}, s{soff} sc1", tag=tag)
        p("s_mov_b64 exec, -1")

    def prologue(self):
        p = self.p
        p("s_cmp_ge_u32 s2, 0x100")
        p("s_cbranch_scc1 L_end")
        for s, off in ((SX, 0), (SWQ, 8), (SWS, 80), (SDBG, 72), (SWO, 16), (SW1, 32), (SB1, 40), (SW2, 48), (SB2, 56), (SOUT, 64)):
            p(f"s_load_dwordx2 {sp(s)}, s[0:1], {off}")
        for s, n in ((SX, 2621440), (SWQ, 2457600), (SWO, 819200), (SW1, 6291456), (SW2, 6291456), (SOUT, 2621440), (SWS, WS_BYTES)):
            p(f"s_mov_b32 s{s+2}, {n}")
            p(f"s_mov_b32 s{s+3}, 0x20000")
        p("v_lshrrev_b32 v4, 6, v0")
        p("v_and_b32 v1, 63, v0")
        p(f"v_readfirstlane_b32 s{sW}, v4")
        p("v_lshrrev_b32 v2, 4, v1")
        p("v_and_b32 v3, 15, v1")
        p(f"s_and_b32 s{sT0}, s2, 1")
        p(f"s_bfe_u32 s{sT1}, s2, 0x20001")
        p(f"s_lshr_b32 s{sI}, s2, 3")
        p(f"s_lshr_b32 s{sT2}, s{sI}, 3")
        p(f"s_and_b32 s{sT3}, s{sI}, 7")
        p(f"s_lshl_b32 s{sRB}, s{sT1}, 2")
        p(f"s_add_u32 s{sRB}, s{sRB}, s{sT2}")
        p(f"s_lshl_b32 s{sHP}, s{sT0}, 3")
        p(f"s_add_u32 s{sHP}, s{sHP}, s{sT3}")
        p(f"s_lshr_b32 s{sST}, s{sT3}, 2")
        p(f"s_lshl_b32 s{sT4}, s{sRB}, 1")
        p(f"s_add_u32 s{sST}, s{sST}, s{sT4}")
        p(f"s_and_b32 s{sDJ}, s{sT3}, 3")
        p(f"s_lshl_b32 s{sT4}, s{sT0}, 2")
        p(f"s_add_u32 s{sDJ}, s{sDJ}, s{sT4}")
        a, b, c, d = self.rot1
        p(f"s_mul_i32 s{sROT}, s{sT3}, {a}")
        p(f"s_mul_i32 s{sT4}, s{sT2}, {b}")
        p(f"s_add_u32 s{sROT}, s{sROT}, s{sT4}")
        p(f"s_mul_i32 s{sT4}, s{sT1}, {c}")
        p(f"s_add_u32 s{sROT}, s{sROT}, s{sT4}")
        p(f"s_mul_i32 s{sT4}, s{sT0}, {d}")
        p(f"s_add_u32 s{sROT}, s{sROT}, s{sT4}")
        p(f"s_mul_i32 s{sT4}, s{sROT}, 205")
        p(f"s_lshr_b32 s{sT4}, s{sT4}, 11")
        p(f"s_mul_i32 s{sT4}, s{sT4}, 10")
        p(f"s_sub_u32 s{sROT}, s{sROT}, s{sT4}")
        p(f"s_mul_i32 s{sT4}, s{sI}, 52")
        p(f"s_lshr_b32 s{sT4}, s{sT4}, 8")
        p(f"s_mul_i32 s{sFT}, s{sT1}, 6")
        p(f"s_add_u32 s{sFT}, s{sFT}, s{sT4}")
        p(f"s_mul_i32 s{sT4}, s{sT4}, 5")
        p(f"s_sub_u32 s{sDT}, s{sI}, s{sT4}")
        p(f"s_mul_i32 s{sT4}, s{sT0}, 5")
        p(f"s_add_u32 s{sDT}, s{sDT}, s{sT4}")
        p(f"s_mul_i32 s{sRING}, s{sW}, {RSTR}")
        p(f"s_add_u32 s{sRING}, s{sRING}, {L_RING}")

    def p1(self):
        p = self.p
        XG, WG, QG, XR, WR0, WR2, QR0, QR2 = 4, 8, 12, 13, 15, 17, 19, 20
        T0, T1, T2 = 21, 22, 23
        ONES = 24
        WB = (28, 48)
        ACC, SUM, GR, CSA = 68, 108, 116, 124
        VL16 = 144
        VONE = 145
        self.VL16, self.VONE = VL16, VONE
        p(f"v_lshrrev_b32 v{T0}, 3, v1")
        p(f"v_and_b32 v{T1}, 7, v1")
        p(f"v_lshrrev_b32 v{T2}, 1, v{T0}")
        p(f"v_xor_b32 v{T1}, v{T1}, v{T2}")
        p(f"v_lshlrev_b32 v{T1}, 4, v{T1}")
        p(f"s_lshl_b32 s{sT0}, s{sW}, 5")
        p(f"v_add_u32 v{T0}, s{sT0}, v{T0}")
        p(f"v_mul_u32_u24 v{T0}, 1280, v{T0}")
        p(f"v_add_u32 v{XG}, v{T0}, v{T1}")
        p(f"v_xor_b32 v{T1}, 64, v{T1}")
        p(f"v_add_u32 v{XG+1}, v{T0}, v{T1}")
        p(f"v_add_u32 v{XG+1}, {8*1280-1024}, v{XG+1}")
        p(f"v_add_u32 v{XG+2}, {16*1280-2048}, v{XG}")
        p(f"v_add_u32 v{XG+3}, {16*1280-2048}, v{XG+1}")
        p(f"v_mul_u32_u24 v{T0}, 26, v1")
        p(f"v_lshrrev_b32 v{T0}, 8, v{T0}")
        p(f"v_mul_u32_u24 v{T1}, 10, v{T0}")
        p(f"v_sub_u32 v{T1}, v1, v{T1}")
        p(f"v_cmp_lt_u32 vcc, 4, v{T1}")
        p(f"v_lshlrev_b32 v{T1}, 4, v{T1}")
        p(f"v_mov_b32 v{T2}, 1200")
        p(f"v_cndmask_b32 v{T2}, 0, v{T2}, vcc")
        p(f"v_add_u32 v{T1}, v{T1}, v{T2}")
        p(f"v_mul_u32_u24 v{T0}, 3840, v{T0}")
        p(f"s_mul_i32 s{sT0}, s{sW}, {16*3840}")
        p(f"s_mul_i32 s{sT1}, s{sHP}, 80")
        p(f"s_add_u32 s{sT0}, s{sT0}, s{sT1}")
        p(f"s_add_u32 s{sT0}, s{sT0}, 1280")
        p(f"v_add3_u32 v{WG}, v{T0}, v{T1}, s{sT0}")
        for n in range(1, 4):
            p(f"v_add_u32 v{WG+n}, {(8*(n&1)+4*(n>>1))*3840-640*n}, v{WG}")
        p(f"s_mov_b32 s{sPB}, s{sROT}")
        p(f"s_mul_i32 s{sA0}, s{sRB}, {128*1280}")
        p(f"s_mul_i32 s{sA1}, s{sW}, 2560")
        p(f"v_lshlrev_b32 v{VL16}, 4, v1")
        p(f"v_mov_b32 v{VONE}, 1")
        p("s_waitcnt lgkmcnt(0)")
        self.stamp("start")

        def dma_setup(pp):
            pp(f"s_lshl_b32 s{sXO}, s{sPB}, 7")
            pp(f"s_add_u32 s{sXO}, s{sXO}, s{sA0}")
            pp(f"s_mul_i32 s{sWO_}, s{sPB}, {64*3840}")
            pp(f"s_add_u32 s{sPB}, s{sPB}, 1")
            pp(f"s_cmp_eq_u32 s{sPB}, 10")
            pp(f"s_cselect_b32 s{sPB}, 0, s{sPB}")

        def dma_x(b):
            out = []
            for n in range(4):
                pp = Prog()
                if n == 0:
                    dma_setup(pp)
                    pp(f"s_add_u32 m0, s{sRING}, {4096*((b+2)%3)}")
                pp(f"buffer_load_dwordx4 v{XG+n}, {srd(SX)}, s{sXO} offen offset:{1024*n} lds", tag=f"L{b}")
                out.append(pp)
            return out

        def dma_w(b):
            out = []
            for n in range(4):
                pp = Prog()
                if n == 0:
                    pp(f"s_add_u32 m0, s{sA1}, {L_W + b*10240}")
                pp("s_mov_b32 exec_hi, 0xff")
                pp(f"buffer_load_dwordx4 v{WG+n}, {srd(SWQ)}, s{sWO_} offen offset:{640*n} lds", tag=f"L{b}")
                pp("s_mov_b32 exec_hi, -1")
                out.append(pp)
            return out

        def dma_q(ks, tag):
            pp = Prog()
            if ks % 2 == 0:
                pp(f"s_mul_i32 s{sWO_}, s{sPB}, {64*3840}")
                pp(f"s_add_u32 s{sPB}, s{sPB}, 1")
                pp(f"s_cmp_eq_u32 s{sPB}, 10")
                pp(f"s_cselect_b32 s{sPB}, 0, s{sPB}")
            else:
                pp(f"s_add_u32 s{sWO_}, s{sWO_}, {32*3840}")
            pp(f"s_add_u32 m0, s{sRING}, {640*ks}")
            pp("s_mov_b32 exec_hi, 0xff")
            pp(f"buffer_load_dwordx4 v{QG}, {srd(SWQ)}, s{sWO_} offen lds", tag=tag)
            pp("s_mov_b32 exec_hi, -1")
            return pp

        for g in dma_x(0) + dma_w(0):
            p.extend(g)
        for k in range(4):
            p(f"v_mov_b32 v{28+k}, 0")
            p(f"v_mov_b32 v{32+k}, -1")
        Lnc = p.newlabel("noclear")
        p("s_cmp_ge_u32 s2, 10")
        p(f"s_cbranch_scc1 {Lnc}")
        p(f"s_lshl_b32 s{sT0}, s2, 2", opt=True)
        p(f"s_add_u32 s{sT0}, s{sT0}, s{sW}", opt=True)
        p(f"s_lshl_b32 s{sT0}, s{sT0}, 10", opt=True)
        p(f"buffer_store_dwordx4 v[28:31], v{VL16}, {srd(SWS)}, s{sT0} offen sc1", opt=True)
        p.label(Lnc)
        p(f"s_lshl_b32 s{sT0}, s{sST}, 2")
        p(f"s_add_u32 s{sT0}, s{sT0}, s{sW}")
        p(f"s_lshl_b32 s{sT0}, s{sT0}, 3")
        p(f"s_add_u32 s{sT0}, s{sT0}, s{sDJ}")
        p(f"s_lshl_b32 s{sT0}, s{sT0}, 7")
        p(f"s_add_u32 s{sT0}, s{sT0}, {WS_STAT}")
        p("s_mov_b64 exec, 0xff")
        p(f"buffer_store_dwordx4 v[32:35], v{VL16}, {srd(SWS)}, s{sT0} offen sc1", tag="clr")
        p("s_mov_b64 exec, -1")
        for g in dma_x(1) + dma_w(1):
            p.extend(g)
        p(f"v_lshrrev_b32 v{T0}, 1, v3")
        p(f"v_xor_b32 v{T0}, v{T0}, v2")
        p(f"v_lshlrev_b32 v{T0}, 4, v{T0}")
        p(f"v_lshlrev_b32 v{T1}, 7, v3")
        p(f"v_add3_u32 v{XR}, v{T0}, v{T1}, s{sRING}")
        p(f"v_xor_b32 v{T0}, 64, v{T0}")
        p(f"v_add3_u32 v{XR+1}, v{T0}, v{T1}, s{sRING}")
        p(f"v_lshrrev_b32 v{T0}, 5, v1")
        p(f"v_lshlrev_b32 v{T0}, 4, v{T0}")
        p(f"v_bfe_u32 v{T1}, v1, 2, 3")
        p(f"v_add_u32 v{T0}, v{T0}, v{T1}")
        p(f"v_mul_u32_u24 v{T0}, 160, v{T0}")
        p(f"v_and_b32 v{T1}, 3, v1")
        p(f"v_lshl_add_u32 v{WR0}, v{T1}, 3, v{T0}")
        p(f"v_add_u32 v{WR0+1}, 51200, v{WR0}")
        p(f"v_mul_u32_u24 v{T2}, 40, v{T1}")
        p(f"v_add3_u32 v{WR2}, v{T0}, v{T2}, 32")
        p(f"v_add_u32 v{WR2+1}, 51200, v{WR2}")
        p(f"v_mul_u32_u24 v{T0}, {RSTR}, v2")
        p(f"v_bfe_u32 v{T2}, v1, 2, 2")
        p(f"v_mul_u32_u24 v{T2}, 160, v{T2}")
        p(f"v_add_u32 v{T0}, v{T0}, v{T2}")
        p(f"v_add_u32 v{T0}, {L_RING}, v{T0}")
        p(f"v_lshl_add_u32 v{QR0}, v{T1}, 3, v{T0}")
        p(f"v_and_b32 v{T1}, 1, v1")
        p(f"v_mul_u32_u24 v{T1}, 40, v{T1}")
        p(f"v_add3_u32 v{QR2}, v{T0}, v{T1}, 32")
        p(f"v_mul_u32_u24 v{T0}, 52, v1")
        p(f"v_lshrrev_b32 v{T0}, 8, v{T0}")
        p(f"v_mul_u32_u24 v{T1}, 5, v{T0}")
        p(f"v_sub_u32 v{T1}, v1, v{T1}")
        p(f"v_lshlrev_b32 v{T1}, 4, v{T1}")
        p(f"v_and_b32 v{T2}, 1, v{T0}")
        p(f"v_lshlrev_b32 v{T2}, 2, v{T2}")
        p(f"v_lshrrev_b32 v{T0}, 1, v{T0}")
        p(f"v_add_u32 v{T0}, v{T0}, v{T2}")
        p(f"v_mul_u32_u24 v{T0}, 3840, v{T0}")
        p(f"s_mul_i32 s{sT0}, s{sW}, {8*3840}")
        p(f"s_mul_i32 s{sT1}, s{sHP}, 80")
        p(f"s_add_u32 s{sT0}, s{sT0}, s{sT1}")
        p(f"v_add3_u32 v{QG}, v{T0}, v{T1}, s{sT0}")
        for k in range(4):
            p(f"v_mov_b32 v{ONES+k}, 0x3f803f80")
        p(f"v_mov_b32 v{T0}, {L_ZERO}")
        p(f"ds_write_b64 v{T0}, v[28:29]", tag="z")

        XA = lambda rt, ks: (2 * ks + rt) * 4
        TOFF = (0, 40, 80, 120)

        def w_reads(pp, ks, buf):
            hi = 1 if ks >= 10 else 0
            base = (ks - 10 * hi) * 5120
            for T in range(5):
                for h in range(2):
                    if T < 4:
                        pp(f"ds_read_b64_tr_b16 {vr(WB[buf]+4*T+2*h, 2)}, v{WR0+hi} offset:{base + 1280*h + TOFF[T]}", tag=f"W{ks}")
                    else:
                        pp(f"ds_read_b64_tr_b16 {vr(WB[buf]+4*T+2*h, 2)}, v{WR2+hi} offset:{base + 1280*h}", tag=f"W{ks}")

        def mf_group(ks, buf):
            pp = Prog()
            z = ks == 0
            for rt in range(2):
                pp(f"{MF} {vr(SUM+4*rt,4)}, {vr(ONES,4)}, {ar(XA(rt,ks),4)}, {'0' if z else vr(SUM+4*rt,4)}")
                pp(f"{MF} {vr(GR+4*rt,4)}, {ar(XA(rt,ks),4)}, {ar(XA(rt,ks),4)}, {'0' if z else vr(GR+4*rt,4)}")
            for T in range(5):
                for rt in range(2):
                    a = ACC + (2 * T + rt) * 4
                    pp(f"{MF} {vr(a,4)}, {ar(XA(rt,ks),4)}, {vr(WB[buf]+4*T,4)}, {'0' if z else vr(a,4)}")
            return pp

        def cs_group(pp, ks, buf, nT, acc, wb):
            L = pp.newlabel("cs")
            pp(f"s_cmp_lg_u32 s{sW}, {ks & 3}")
            pp(f"s_cbranch_scc1 {L}")
            for T in range(nT):
                pp(f"{MF} {vr(acc+4*T,4)}, {vr(ONES,4)}, {vr(wb+4*T,4)}, {'0' if ks < 4 else vr(acc+4*T,4)}", opt=True)
            pp.label(L)

        for b in range(10):
            if b > 0:
                p.waitlg(f"W{2*b-1}")
            p.waitvm(f"L{b}")
            p("s_barrier")
            if b == 1:
                Lg = p.newlabel("nogo")
                p("s_cmp_ge_u32 s2, 4")
                p(f"s_cbranch_scc1 {Lg}")
                p(f"s_lshl_b32 s{sT0}, s2, 2", opt=True)
                p(f"s_add_u32 s{sT0}, s{sT0}, s{sW}", opt=True)
                p(f"s_lshl_b32 s{sT0}, s{sT0}, 2", opt=True)
                p(f"v_mov_b32 v{T0}, s{sT0}", opt=True)
                p("s_mov_b64 exec, 1", opt=True)
                p(f"global_store_dword v{T0}, v{VONE}, {sp(SDBG)} sc1", opt=True)
                p("s_mov_b64 exec, -1", opt=True)
                p.label(Lg)
            slot = (b + 2) % 3
            for a in range(2):
                for rt in range(2):
                    p(f"ds_read_b128 {ar(XA(rt, 2*b+a),4)}, v{XR+a} offset:{4096*slot + 2048*rt}", tag=f"W{2*b}")
            w_reads(p, 2 * b, 0)
            if b + 2 < 10:
                f1, f2 = dma_x(b + 2), dma_w(b + 2)
            else:
                if b == 8:
                    p(f"s_mov_b32 s{sPB}, s{sROT}")
                q0 = 6 * (b - 8)
                f1 = [dma_q(q0 + k, "Q01") for k in range(3)]
                f2 = [dma_q(q0 + 3 + k, "Q01") for k in range(3)]
            if b > 0:
                p.extend(interleave(mf_group(2 * b - 1, 1), f1))
                cs_group(p, 2 * b - 1, 1, 5, CSA, WB[1])
            else:
                for g in f1:
                    p.extend(g)
            w_reads(p, 2 * b + 1, 1)
            p.waitlg(f"W{2*b}")
            p.extend(interleave(mf_group(2 * b, 0), f2))
            cs_group(p, 2 * b, 0, 5, CSA, WB[0])
        p.waitlg("W19")
        p.extend(interleave(mf_group(19, 1), [dma_q(12 + k, "Q2") for k in range(8)]))
        cs_group(p, 19, 1, 5, CSA, WB[1])
        self.stamp("kvpass")

        E = 28
        MU = 146
        RQ = 148
        R1 = 152
        AF = 168
        p(f"s_load_dwordx16 s[{sTAB}:{sTAB+15}], {sp(SDBG)}, 0 glc", tag="go")
        p(f"v_and_b32 v{T0}, 3, v3")
        p(f"v_cmp_eq_u32 {sp(sM0)}, 1, v{T0}")
        p(f"v_cmp_eq_u32 {sp(sM1)}, 2, v{T0}")
        p(f"v_cmp_eq_u32 {sp(sM2)}, 3, v{T0}")
        p(f"v_lshrrev_b32 v{T1}, 2, v3")
        p(f"v_cmp_eq_u32 vcc, v{T1}, v2")
        p(f"s_lshl_b32 s{sT0}, s{sW}, 7")
        p(f"s_add_u32 s{sT0}, s{sT0}, {L_RS}")
        p(f"v_lshl_add_u32 v{T1}, v3, 2, s{sT0}")
        p(f"v_mov_b32 v{T2}, {L_RSD}")
        p(f"v_cndmask_b32 v{T2}, v{T2}, v{T1}, vcc")
        for T in range(5):
            p(f"v_mov_b32 v{E+T}, v{CSA+4*T}")
        p(f"s_lshl_b32 s{sT1}, s{sW}, 9")
        p(f"s_add_u32 s{sT1}, s{sT1}, {L_CS}")
        p(f"v_lshl_add_u32 v{E+8}, v3, 5, s{sT1}")
        p(f"ds_write_b128 v{E+8}, {vr(E,4)}", tag="ex")
        p(f"ds_write_b32 v{E+8}, v{E+4} offset:16", tag="ex")
        p(f"s_mov_b32 s{sT2}, {f2u(1.0/640)}")
        p(f"s_mov_b32 s{sT3}, {f2u(1e-5)}")
        for rt in range(2):
            g = GR + 4 * rt
            p(f"v_mul_f32 v{MU+rt}, s{sT2}, v{SUM+4*rt}")
            p(f"v_cndmask_b32 v{g}, v{g}, v{g+1}, {sp(sM0)}")
            p(f"v_cndmask_b32 v{g}, v{g}, v{g+2}, {sp(sM1)}")
            p(f"v_cndmask_b32 v{g}, v{g}, v{g+3}, {sp(sM2)}")
            p(f"v_mul_f32 v{g+1}, v{MU+rt}, v{MU+rt}")
            p(f"v_fma_f32 v{g}, v{g}, s{sT2}, -v{g+1}")
            p(f"v_max_f32 v{g}, 0, v{g}")
            p(f"v_add_f32 v{g}, s{sT3}, v{g}")
            p(f"v_rsq_f32 v{g}, v{g}")
            p(f"ds_write_b32 v{T2}, v{g} offset:{64*rt}", tag="ex")
        for rt in range(2):
            p(f"v_cvt_pk_bf16_f32 v{E+10}, -v{MU+rt}, 0")
            p(f"v_lshlrev_b32 v{E+11}, 16, v{E+10}")
            p(f"v_sub_f32 v{E+12}, -v{MU+rt}, v{E+11}")
            p(f"v_cvt_pk_bf16_f32 v{AF+2*rt}, v{E+11}, v{E+12}")
            p(f"v_mov_b32 v{AF+2*rt+1}, v{E+10}")
        p(f"v_lshlrev_b32 v{E+9}, 9, v2")
        p(f"v_lshl_add_u32 v{E+9}, v3, 5, v{E+9}")
        p(f"v_add_u32 v{E+9}, {L_CS}, v{E+9}")
        CSR = 172
        p(f"v_mov_b32 v{CSR}, v{E+9}")
        p(f"v_mov_b32 v{CSR+1}, v{E+8}")
        p(f"v_lshl_add_u32 v{T2}, v2, 4, s{sT0}")
        p("s_waitcnt lgkmcnt(0)")
        p("s_barrier")
        p(f"ds_read_b128 {vr(E,4)}, v{E+9}", tag="ex2")
        p(f"ds_read_b32 v{E+4}, v{E+9} offset:16", tag="ex2")
        for rt in range(2):
            p(f"ds_read_b128 {vr(R1+4*rt,4)}, v{T2} offset:{64*rt}", tag="ex3")
            p(f"ds_read_b32 v{RQ+rt}, v{T1} offset:{64*rt}", tag="ex3")
        p.waitlg("ex2")

        def cs_frags(src, dst, n):
            for T in range(n):
                p(f"v_cvt_pk_bf16_f32 v{dst+2*T}, v{src+T}, v{src+T}")
            for T in range(n):
                p(f"v_lshlrev_b32 v{dst+2*T+1}, 16, v{dst+2*T}")
            for T in range(n):
                p(f"v_sub_f32 v{dst+2*T+1}, v{src+T}, v{dst+2*T+1}")
            for T in range(n):
                p(f"v_cvt_pk_bf16_f32 v{dst+2*T+1}, v{dst+2*T+1}, 0")

        cs_frags(E, E + 10, 5)
        for T in (0, 1, 4, 2, 3):
            for rt in range(2):
                a = ACC + (2 * T + rt) * 4
                p(f"{MF16} {vr(a,4)}, {vr(AF+2*rt,2)}, {vr(E+10+2*T,2)}, {vr(a,4)}")
        p.waitlg("ex3")
        p(f"s_mov_b32 s{sT2}, {f2u(LOG2E)}")
        for k in range(8):
            p(f"v_mul_f32 v{R1+8+k}, s{sT2}, v{R1+k}")
        for k in range(2):
            p(f"v_mul_f32 v{RQ+2+k}, s{sT2}, v{RQ+k}")
        p(f"s_mov_b32 s{sC0}, {f2u(1e-6)}")
        p(f"s_mov_b32 s{sC0+1}, {f2u(1e-6)}")
        p(f"v_cmp_gt_u32 {sp(sM0)}, 8, v3")

        def phi4(a, tmp, r, r2, bcast):
            sel = " op_sel_hi:[1,0]" if bcast else ""
            sel3 = " op_sel_hi:[1,0,1]" if bcast else ""
            rr = (lambda x, k: vr(x, 2)) if bcast else (lambda x, k: vr(x + k, 2))
            for k in (0, 2):
                p(f"v_pk_mul_f32 {vr(tmp+k,2)}, {vr(a+k,2)}, {rr(r2,k)}{sel}")
            for k in (0, 2):
                p(f"v_pk_fma_f32 {vr(a+k,2)}, {vr(a+k,2)}, {rr(r,k)}, {sp(sC0)}{sel3}")
            for k in range(4):
                p(f"v_exp_f32_e64 v{tmp+k}, v{tmp+k} clamp")
            for k in range(4):
                p(f"v_max_f32 v{a+k}, s{sC0}, v{a+k}")
            for k in (0, 2):
                p(f"v_pk_add_f32 {vr(a+k,2)}, {vr(a+k,2)}, {vr(tmp+k,2)}")
        self.phi4 = phi4

        PK = 28
        TM = 52
        for T, dst in ((0, PK), (1, PK + 4)):
            for rt in range(2):
                a = ACC + (2 * T + rt) * 4
                phi4(a, TM, R1 + 4 * rt, R1 + 8 + 4 * rt, False)
                p(f"v_cvt_pk_bf16_f32 v{dst+2*rt}, v{a}, v{a+1}")
                p(f"v_cvt_pk_bf16_f32 v{dst+2*rt+1}, v{a+2}, v{a+3}")
        for rt in range(2):
            a = ACC + (8 + rt) * 4
            for k in (0, 2):
                p(f"v_pk_mul_f32 {vr(TM+4+k,2)}, {vr(a+k,2)}, {vr(R1+4*rt+k,2)}")
            p(f"v_cvt_pk_bf16_f32 v{PK+20+2*rt}, v{TM+4}, v{TM+5}")
            p(f"v_cvt_pk_bf16_f32 v{PK+20+2*rt+1}, v{TM+6}, v{TM+7}")
            phi4(a, TM, R1 + 4 * rt, R1 + 8 + 4 * rt, False)
            p(f"v_cvt_pk_bf16_f32 v{PK+8+2*rt}, v{a}, v{a+1}")
            p(f"v_cvt_pk_bf16_f32 v{PK+8+2*rt+1}, v{a+2}, v{a+3}")
        for k in range(4):
            p(f"v_cndmask_b32 v{PK+20+k}, v{PK+20+k}, v{ONES}, {sp(sM0)}")
        for T, dst in ((2, PK + 12), (3, PK + 16)):
            for rt in range(2):
                a = ACC + (2 * T + rt) * 4
                for k in (0, 2):
                    p(f"v_pk_mul_f32 {vr(a+k,2)}, {vr(a+k,2)}, {vr(R1+4*rt+k,2)}")
                p(f"v_cvt_pk_bf16_f32 v{dst+2*rt}, v{a}, v{a+1}")
                p(f"v_cvt_pk_bf16_f32 v{dst+2*rt+1}, v{a+2}, v{a+3}")
        M = 68
        PKf = lambda t: vr(PK + 4 * t, 4)
        Vf = lambda t: vr(PK + 12 + 4 * t, 4)
        p(f"{MF} {vr(M+8,4)}, {PKf(0)}, {Vf(2)}, 0")
        p(f"{MF} {vr(M+16,4)}, {PKf(1)}, {Vf(2)}, 0")
        p(f"{MF} {vr(M+24,4)}, {PKf(2)}, {Vf(2)}, 0")
        p(f"{MF} {vr(M+12,4)}, {PKf(2)}, {Vf(0)}, 0")
        p(f"{MF} {vr(M+20,4)}, {PKf(2)}, {Vf(1)}, 0")
        p(f"{MF} {vr(M,4)}, {PKf(0)}, {Vf(0)}, 0")
        p(f"{MF} {vr(M+4,4)}, {PKf(1)}, {Vf(1)}, 0")
        p(f"v_and_b32 v{T0}, 4, v3")
        p(f"v_cmp_ne_u32 {sp(sM0)}, 0, v{T0}")
        p(f"v_cmp_eq_u32 {sp(sM1)}, 1, v2")
        for k in range(4):
            p(f"v_cndmask_b32 v{M+8+k}, v{M+8+k}, v{M+16+k}, {sp(sM0)}")
        for k in range(4):
            p(f"v_cndmask_b32 v{M+12+k}, v{M+12+k}, v{M+20+k}, {sp(sM1)}")
        for k in range(4):
            p(f"v_permlane32_swap_b32 v{M+12+k}, v{M+24+k}")
        for t in range(4):
            L = p.newlabel("kvred")
            L2 = p.newlabel("kvred2")
            p(f"s_cmp_eq_u32 s{sW}, {t}")
            p(f"s_cbranch_scc1 {L}")
            p(f"s_sub_u32 s{sT0}, s{sW}, {t+1}", opt=True)
            p(f"s_and_b32 s{sT0}, s{sT0}, 3", opt=True)
            p(f"s_lshl_b32 s{sT0}, s{sT0}, 10", opt=True)
            p(f"s_add_u32 s{sT0}, s{sT0}, {L_RED1 + t*3072}", opt=True)
            p(f"v_add_u32 v{T0}, s{sT0}, v{VL16}", opt=True)
            p(f"ds_write_b128 v{T0}, {vr(M+4*t,4)}", opt=True)
            p(f"s_branch {L2}", opt=True)
            p.label(L)
            for k in range(4):
                p(f"v_mov_b32 v{M+16+k}, v{M+4*t+k}", opt=True)
            p.label(L2)
        p(f"s_mul_i32 s{sT0}, s{sW}, 3072")
        p(f"s_add_u32 s{sT0}, s{sT0}, {L_RED1}")
        p(f"v_add_u32 v{T1}, s{sT0}, v{VL16}")
        p.waitvm("Q01")
        p("s_waitcnt lgkmcnt(0)")
        p("s_barrier")
        for k in range(3):
            p(f"ds_read_b128 {vr(M+4*k,4)}, v{T1} offset:{1024*k}", tag=f"kr{k}")
        p(f"s_lshl_b32 s{sT0}, s{sHP}, 2")
        p(f"s_add_u32 s{sT0}, s{sT0}, s{sW}")
        p(f"s_lshl_b32 s{sA2}, s{sT0}, 7")
        p(f"s_lshl_b32 s{sA3}, s{sT0}, 14")
        p(f"s_add_u32 s{sA3}, s{sA3}, {WS_KVP}")
        p(f"s_lshl_b32 s{sT0}, s{sRB}, 10")
        p(f"s_add_u32 s{sT0}, s{sT0}, s{sA3}")
        for k in range(3):
            p.waitlg(f"kr{k}")
            for j in (0, 2):
                p(f"v_pk_add_f32 {vr(M+16+j,2)}, {vr(M+16+j,2)}, {vr(M+4*k+j,2)}")
        p(f"buffer_store_dwordx4 {vr(M+16,4)}, v{VL16}, {srd(SWS)}, s{sT0} offen sc1", tag="KVP")
        self.stamp("kvstore")
        for k in range(1, 8):
            p(f"s_and_b64 {sp(sTAB)}, {sp(sTAB)}, {sp(sTAB+2*k)}")
        p(f"s_and_b32 s{sTAB}, s{sTAB}, s{sTAB+1}")
        Lgo = p.newlabel("go")
        Lsp = p.newlabel("gospin")
        p(f"s_cbranch_scc1 {Lgo}")
        p(f"v_lshlrev_b32 v{T0}, 2, v3", opt=True)
        p(f"s_mov_b32 s{sCNT}, 0", opt=True)
        p.label(Lsp)
        p(f"global_load_dword v{T1}, v{T0}, {sp(SDBG)} sc1", opt=True)
        p(f"s_add_u32 s{sCNT}, s{sCNT}, 1", opt=True)
        p("s_waitcnt vmcnt(0)", opt=True)
        p(f"v_cmp_ne_u32 vcc, 1, v{T1}", opt=True)
        p(f"s_bitcmp1_b32 s{sCNT}, 19", opt=True)
        p(f"s_cbranch_scc1 {Lgo}", opt=True)
        p(f"s_cbranch_vccnz {Lsp}", opt=True)
        p.label(Lgo)

        OG = 4
        self.OG = OG
        p(f"s_mul_i32 s{sT0}, s{sDJ}, 160")
        for i in range(5):
            p(f"v_add_u32 v{T0}, {64*i}, v1")
            p(f"v_mul_u32_u24 v{T1}, 205, v{T0}")
            p(f"v_lshrrev_b32 v{T1}, 11, v{T1}")
            p(f"v_mul_u32_u24 v{T1}, {1280-160}, v{T1}")
            p(f"v_lshlrev_b32 v{T0}, 4, v{T0}")
            p(f"v_add3_u32 v{OG+i}, v{T0}, v{T1}, s{sT0}")

        def dma_wo(rnd, i):
            pp = Prog()
            if i == 0:
                if rnd < 4:
                    pp(f"s_add_u32 s{sT4}, s{sST}, {rnd}")
                    pp(f"s_and_b32 s{sT4}, s{sT4}, 3")
                else:
                    pp(f"s_mov_b32 s{sT4}, 4")
                pp(f"s_lshl_b32 s{sT4}, s{sT4}, 2")
                pp(f"s_add_u32 s{sT4}, s{sT4}, s{sW}")
                pp(f"s_mul_i32 s{sWO_}, s{sT4}, {32*1280}")
                pp(f"s_mul_i32 s{sT4}, s{sT4}, 5120")
            pp(f"s_add_u32 m0, s{sT4}, {L_W + 1024*i}")
            pp(f"buffer_load_dwordx4 v{OG+i}, {srd(SWO)}, s{sWO_} offen lds", tag="WO")
            return pp

        QB = (28, 40)
        QA = 68
        CSQ = 96

        def q_reads(pp, ks, buf):
            for T in range(3):
                for h in range(2):
                    if T < 2:
                        pp(f"ds_read_b64_tr_b16 {vr(QB[buf]+4*T+2*h, 2)}, v{QR0} offset:{640*ks + 80*h + 40*T}", tag=f"Q{ks}r")
                    else:
                        pp(f"ds_read_b64_tr_b16 {vr(QB[buf]+4*T+2*h, 2)}, v{QR2} offset:{640*ks + 80*h}", tag=f"Q{ks}r")

        wo_list = [dma_wo(r, i) for r in range(5) for i in range(5)]
        q_reads(p, 0, 0)
        for ks in range(20):
            buf = ks & 1
            if ks + 1 == 12:
                p.waitvm("Q2")
                p("s_barrier")
            if ks + 1 < 20:
                q_reads(p, ks + 1, buf ^ 1)
            p.waitlg(f"Q{ks}r")
            pp = Prog()
            for T in range(3):
                for rt in range(2):
                    a = QA + (2 * T + rt) * 4
                    pp(f"{MF} {vr(a,4)}, {vr(QB[buf]+4*T,4)}, {ar(XA(rt,ks),4)}, {'0' if ks == 0 else vr(a,4)}")
            fill = []
            if ks < 10:
                fill = wo_list[2 * ks:2 * ks + 2]
            elif 12 <= ks < 17:
                fill = [wo_list[20 + ks - 12]]
            p.extend(interleave(pp, fill))
            cs_group(p, ks, buf, 3, CSQ, QB[buf])
            if ks == 8:
                p.waitvm("KVP")
                self.signal(sA2, VONE)
        self.stamp("qpass")
        for T in range(3):
            p(f"v_mov_b32 v{E+T}, v{CSQ+4*T}")
        p(f"ds_write_b128 v{CSR+1}, {vr(E,4)} offset:2048", tag="ex")
        p("s_waitcnt lgkmcnt(0)")
        p("s_barrier")
        p(f"ds_read_b128 {vr(E,4)}, v{CSR} offset:2048", tag="ex2")
        GA = 176
        p(f"v_mov_b32 v{T2}, 0")
        self.poll(T2, sA2, 16, T1, "A")
        for k in range(16):
            if k % 4 == 0 and k:
                p(f"s_add_u32 s{sA3}, s{sA3}, 4096")
            p(f"buffer_load_dwordx4 {vr(GA+4*k,4)}, v{VL16}, {srd(SWS)}, s{sA3} offen offset:{1024*(k%4)} sc1", tag=f"G{k}")
        self.stamp("pollA")
        p(f"s_lshl_b32 s{sA4}, s{sST}, 2")
        p(f"s_add_u32 s{sA4}, s{sA4}, s{sW}")
        p(f"s_mul_i32 s{sT0}, s{sA4}, {16*1280}")
        for i in range(3):
            p(f"s_add_u32 m0, s{sRING}, {1024*i}")
            p(f"buffer_load_dwordx4 v{OG+i}, {srd(SX)}, s{sT0} offen lds", tag="XT")
        p.waitlg("ex2")
        cs_frags(E, E + 10, 3)
        for T in range(3):
            for rt in range(2):
                a = QA + (2 * T + rt) * 4
                p(f"{MF16} {vr(a,4)}, {vr(E+10+2*T,2)}, {vr(AF+2*rt,2)}, {vr(a,4)}")
        AD = 108
        p(f"v_lshlrev_b32 v{T0}, 3, v1")
        p(f"v_add_u32 v{AD}, {L_KVT}, v{T0}")
        p(f"v_mov_b32 v{T1}, {L_ZERO}")
        p(f"v_add_u32 v{T0}, {L_KVT + 1536}, v{T0}")
        p(f"v_cmp_eq_u32 {sp(sM0)}, 0, v2")
        p(f"v_cmp_eq_u32 {sp(sM1)}, 1, v2")
        p(f"v_lshrrev_b32 v{T2}, 2, v3")
        p(f"v_cmp_eq_u32 {sp(sM2)}, 0, v{T2}")
        p(f"v_cmp_eq_u32 {sp(sM3)}, 1, v{T2}")
        p(f"v_cndmask_b32 v{AD+1}, v{T1}, v{T0}, {sp(sM0)}")
        p(f"v_cndmask_b32 v{AD+2}, v{T1}, v{T0}, {sp(sM1)}")
        p(f"v_add_u32 v{T2}, {1024+64}, v{AD}")
        p(f"v_cndmask_b32 v{AD+3}, v{T1}, v{T2}, {sp(sM2)}")
        p(f"v_cndmask_b32 v{AD+4}, v{T1}, v{T2}, {sp(sM3)}")
        p(f"v_add_u32 v{T2}, {256+64}, v{T0}")
        p(f"s_and_b64 {sp(sM2)}, {sp(sM2)}, {sp(sM0)}")
        p(f"s_and_b64 {sp(sM3)}, {sp(sM3)}, {sp(sM1)}")
        p(f"v_cndmask_b32 v{AD+5}, v{T1}, v{T2}, {sp(sM2)}")
        p(f"v_cndmask_b32 v{AD+6}, v{T1}, v{T2}, {sp(sM3)}")
        p(f"v_lshlrev_b32 v{T2}, 7, v2")
        p(f"v_add_u32 v{AD+7}, {L_KVT + 1024}, v{T2}")
        p(f"v_add_u32 v{T2}, {L_KVT + 1536 + 256}, v{T2}")
        p(f"v_cndmask_b32 v{AD+8}, v{T1}, v{T2}, {sp(sM0)}")
        p(f"v_cndmask_b32 v{AD+9}, v{T1}, v{T2}, {sp(sM1)}")
        p(f"s_lshl_b32 s{sT0}, s{sW}, 9")
        p(f"v_add_u32 v{AD+10}, s{sT0}, v{AD}")
        FQ = 28
        RB = 120
        for rt in range(2):
            p(f"v_mov_b32 v{RB+2*rt}, v{RQ+rt}")
            p(f"v_mov_b32 v{RB+4+2*rt}, v{RQ+2+rt}")
        for rt in range(2):
            for T in range(3):
                a = QA + (2 * T + rt) * 4
                phi4(a, TM, RB + 2 * rt, RB + 4 + 2 * rt, True)
                if T < 2:
                    p(f"v_cvt_pk_bf16_f32 v{FQ+8*rt+4*T}, v{a}, v{a+1}")
                    p(f"v_cvt_pk_bf16_f32 v{FQ+8*rt+4*T+1}, v{a+2}, v{a+3}")
                else:
                    for u in range(2):
                        p(f"v_cvt_pk_bf16_f32 v{FQ+8*rt+4*u+2}, v{a}, v{a+1}")
                        p(f"v_cvt_pk_bf16_f32 v{FQ+8*rt+4*u+3}, v{a+2}, v{a+3}")
        self.stamp("qepi")
        for k in range(1, 16):
            p.waitvm(f"G{k}")
            d = GA if k % 2 == 0 or k == 1 else GA + 4
            if k == 1:
                continue
            for j in (0, 2):
                p(f"v_pk_add_f32 {vr(d+j,2)}, {vr(d+j,2)}, {vr(GA+4*k+j,2)}")
        for j in (0, 2):
            p(f"v_pk_add_f32 {vr(GA+j,2)}, {vr(GA+j,2)}, {vr(GA+4+j,2)}")
        p(f"v_cvt_pk_bf16_f32 v{GA+4}, v{GA}, v{GA+1}")
        p(f"v_cvt_pk_bf16_f32 v{GA+5}, v{GA+2}, v{GA+3}")
        p(f"ds_write_b64 v{AD+10}, {vr(GA+4,2)}")
        p("s_waitcnt lgkmcnt(0)")
        p("s_barrier")
        OP = 44
        rd = [(OP + 16, AD + 7, 0), (OP + 18, AD + 8, 0), (OP + 20, AD + 7, 32), (OP + 22, AD + 9, 0),
              (OP, AD, 0), (OP + 2, AD + 1, 0), (OP + 4, AD, 512), (OP + 6, AD + 2, 0),
              (OP + 8, AD + 3, 0), (OP + 10, AD + 5, 0), (OP + 12, AD + 4, 0), (OP + 14, AD + 6, 0)]
        for k, (d, a, off) in enumerate(rd):
            p(f"ds_read_b64 {vr(d,2)}, v{a} offset:{off}", tag=f"op{k//4}")
        p(f"s_lshl_b32 s{sT0}, s{sRB}, 2")
        p(f"s_add_u32 s{sT0}, s{sT0}, s{sW}")
        p(f"s_lshl_b32 s{sA2}, s{sT0}, 7")
        p(f"s_add_u32 s{sA2}, s{sA2}, {WS_CB}")
        p(f"s_mul_i32 s{sT0}, s{sT0}, {2*20480}")
        p(f"s_add_u32 s{sT0}, s{sT0}, {WS_O}")
        p(f"s_lshl_b32 s{sT1}, s{sHP}, 10")
        p(f"s_add_u32 s{sT1}, s{sT1}, s{sT0}")
        p(f"s_add_u32 s{sT2}, s{sT1}, 20480")
        p(f"s_lshl_b32 s{sT3}, s{sHP}, 8")
        p(f"s_add_u32 s{sT3}, s{sT3}, s{sT0}")
        p(f"s_add_u32 s{sT3}, s{sT3}, 16384")
        p(f"s_add_u32 s{sT4}, s{sT3}, 20480")
        p(f"v_lshlrev_b32 v{T0}, 4, v3")
        p(f"v_lshl_add_u32 v{T0}, v2, 3, v{T0}")
        O = 68
        p.waitlg("op0")
        for rt in range(2):
            p(f"{MF} {vr(O+20*rt+12,4)}, {vr(OP+16,4)}, {vr(FQ+8*rt,4)}, 0")
            p(f"{MF} {vr(O+20*rt+16,4)}, {vr(OP+20,4)}, {vr(FQ+8*rt+4,4)}, 0")
        p.waitlg("op1")
        for rt in range(2):
            p(f"{MF} {vr(O+20*rt,4)}, {vr(OP,4)}, {vr(FQ+8*rt,4)}, 0")
            p(f"{MF} {vr(O+20*rt+4,4)}, {vr(OP+4,4)}, {vr(FQ+8*rt+4,4)}, 0")
        p.waitlg("op2")
        for rt in range(2):
            p(f"{MF} {vr(O+20*rt+8,4)}, {vr(OP+8,4)}, {vr(FQ+8*rt,4)}, 0")
        for rt in range(2):
            p(f"{MF} {vr(O+20*rt+8,4)}, {vr(OP+12,4)}, {vr(FQ+8*rt+4,4)}, {vr(O+20*rt+8,4)}")
        for rt in range(2):
            for u in (12, 16):
                p(f"v_add_f32 v{O+20*rt+u}, s{sC0}, v{O+20*rt+u}")
        for rt in range(2):
            for u in (12, 16):
                p(f"v_rcp_f32 v{O+20*rt+u}, v{O+20*rt+u}")
        for rt in range(2):
            o = O + 20 * rt
            p(f"v_cndmask_b32 v{o+14}, v{o+12}, v{o+16}, {sp(sM1)}")
            for k in (0, 2):
                p(f"v_pk_mul_f32 {vr(o+k,2)}, {vr(o+k,2)}, {vr(o+12,2)} op_sel_hi:[1,0]")
                p(f"v_pk_mul_f32 {vr(o+4+k,2)}, {vr(o+4+k,2)}, {vr(o+16,2)} op_sel_hi:[1,0]")
            for k in range(4):
                p(f"v_cvt_pk_bf16_f32 v{FQ+4*rt+k}, v{o+2*k}, v{o+2*k+1}")
            p(f"buffer_store_dwordx4 {vr(FQ+4*rt,4)}, v{VL16}, {srd(SWS)}, s{sT1+rt} offen sc1", tag="OS")
        for rt in range(2):
            o = O + 20 * rt
            for k in (0, 2):
                p(f"v_pk_mul_f32 {vr(o+8+k,2)}, {vr(o+8+k,2)}, {vr(o+14,2)} op_sel_hi:[1,0]")
            for k in range(2):
                p(f"v_cvt_pk_bf16_f32 v{FQ+8+2*rt+k}, v{o+8+2*k}, v{o+8+2*k+1}")
        p("s_mov_b32 exec_hi, 0")
        for rt in range(2):
            p(f"buffer_store_dwordx2 {vr(FQ+8+2*rt,2)}, v{T0}, {srd(SWS)}, s{sT3+rt} offen sc1", tag="OS")
        p("s_mov_b32 exec_hi, -1")
        self.stamp("ostore")

    def pump_setup(self):
        p = self.p
        T0, T1, T2 = 21, 22, 23
        self.G1, self.G2, self.PR = 4, 8, 12
        G1, G2, PR = self.G1, self.G2, self.PR
        p(f"v_lshrrev_b32 v{T0}, 3, v1")
        p(f"v_and_b32 v{T1}, 7, v1")
        p(f"v_and_b32 v{T2}, 6, v{T0}")
        p(f"v_xor_b32 v{T1}, v{T1}, v{T2}")
        p(f"v_lshlrev_b32 v{T1}, 4, v{T1}")
        p(f"s_lshl_b32 s{sT0}, s{sFT}, 7")
        p(f"s_mul_i32 s{sT1}, s{sW}, {512*3072}")
        p(f"s_add_u32 s{sT0}, s{sT0}, s{sT1}")
        p(f"v_mul_u32_u24 v{T2}, 3072, v{T0}")
        p(f"v_add3_u32 v{G1}, v{T1}, v{T2}, s{sT0}")
        p(f"s_lshl_b32 s{sT0}, s{sST}, 7")
        p(f"s_mul_i32 s{sT1}, s{sW}, {384*4096}")
        p(f"s_add_u32 s{sT0}, s{sT0}, s{sT1}")
        p(f"v_lshlrev_b32 v{T2}, 12, v{T0}")
        p(f"v_add3_u32 v{G2}, v{T1}, v{T2}, s{sT0}")
        for n in range(1, 4):
            p(f"v_add_u32 v{G1+n}, {n*(8*3072-1024)}, v{G1}")
            p(f"v_add_u32 v{G2+n}, {n*(8*4096-1024)}, v{G2}")
        p(f"v_lshrrev_b32 v{T0}, 5, v1")
        p(f"v_lshlrev_b32 v{T0}, 4, v{T0}")
        p(f"v_bfe_u32 v{T1}, v1, 2, 3")
        p(f"v_add_u32 v{T0}, v{T0}, v{T1}")
        p(f"v_lshlrev_b32 v{T0}, 7, v{T0}")
        p(f"v_and_b32 v{T2}, 3, v1")
        p(f"v_lshl_add_u32 v{T0}, v{T2}, 3, v{T0}")
        p(f"v_lshrrev_b32 v{T1}, 1, v{T1}")
        for Tl in range(4):
            p(f"s_add_u32 s{sT0}, s{sW}, {Tl}")
            p(f"s_and_b32 s{sT0}, s{sT0}, 3")
            p(f"v_xor_b32 v{T2}, s{sT0}, v{T1}")
            p(f"v_lshl_add_u32 v{PR+Tl}, v{T2}, 5, v{T0}")
            p(f"v_add_u32 v{PR+Tl}, s{sRING}, v{PR+Tl}")
        p(f"s_mul_i32 s{sT0}, s{sFT}, {self.rot3}")
        for ks in range(16):
            p(f"s_add_u32 s{sTAB+ks}, s{sT0}, {ks}")
            p(f"s_and_b32 s{sTAB+ks}, s{sTAB+ks}, 15")
            p(f"s_lshl_b32 s{sTAB+ks}, s{sTAB+ks}, 10")

    def dma_w1(self, ks):
        pp = Prog()
        pp(f"s_mul_i32 s{sWO_}, s{sTAB+ks}, 96")
        pp(f"s_add_u32 m0, s{sRING}, {4096*(ks%3)}")
        for n in range(4):
            pp(f"buffer_load_dwordx4 v{self.G1+n}, {srd(SW1)}, s{sWO_} offen offset:{1024*n} lds", tag=f"w1_{ks}")
        return pp

    def rd_slot(self, dst, off, tag, regs=None):
        pp = Prog()
        regs = regs if regs is not None else self.PR
        for Tl in range(4):
            for h in range(2):
                pp(f"ds_read_b64_tr_b16 {dst(4*Tl+2*h)}, v{regs+Tl} offset:{off + 1024*h}", tag=tag)
        return pp

    def pump_w1(self, k0, k1):
        p = self.p
        for ks in range(k0, min(k0 + 3, k1)):
            p.extend(self.dma_w1(ks))
        for ks in range(k0, k1):
            p.waitvm(f"w1_{ks}")
            p.extend(self.rd_slot(lambda k: ar(16 * ks + k, 2), 4096 * (ks % 3), f"w1r_{ks}"))
            if ks + 3 < k1:
                p.waitlg(f"w1r_{ks}")
                p.extend(self.dma_w1(ks + 3))
        p("s_waitcnt lgkmcnt(0)")

    def dma_w2(self, ks, m0expr):
        pp = Prog()
        pp(f"s_add_u32 s{sWO_}, s{sROT}, {ks}")
        pp(f"s_cmp_ge_u32 s{sWO_}, 12")
        pp(f"s_cselect_b32 s{sT5}, 12, 0")
        pp(f"s_sub_u32 s{sWO_}, s{sWO_}, s{sT5}")
        pp(f"s_lshl_b32 s{sWO_}, s{sWO_}, 17")
        pp(m0expr)
        for n in range(4):
            pp(f"buffer_load_dwordx4 v{self.G2+n}, {srd(SW2)}, s{sWO_} offen offset:{1024*n} lds", tag=f"w2_{ks}")
        return pp

    def p2(self):
        p = self.p
        T0, T1, T2 = 21, 22, 23
        VL16, VONE = self.VL16, self.VONE
        H = 24
        BB = (44, 64)
        OF = 176
        if self.stamps:
            OF = 172
        RA = 16
        p(f"v_lshrrev_b32 v{T0}, 2, v1")
        p(f"v_mul_u32_u24 v{T0}, 160, v{T0}")
        p(f"v_and_b32 v{T1}, 3, v1")
        p(f"v_lshl_add_u32 v{RA}, v{T1}, 3, v{T0}")
        p(f"v_add_u32 v{RA+1}, 51200, v{RA}")
        p(f"v_add_u32 v{RA+4}, s{sRING}, v{RA}")
        p(f"v_mul_u32_u24 v{T0}, {36*160}, v2")
        p(f"v_add_u32 v{T0}, {16*160}, v{T0}")
        p(f"v_add_u32 v{RA+2}, v{T0}, v{RA}")
        p(f"v_add_u32 v{RA+3}, 51200, v{RA+2}")
        p.waitvm("OS")
        self.signal(sA2, VONE)
        self.stamp("sigB")
        for T in range(5):
            p(f"ds_read_b64_tr_b16 {vr(BB[0]+2*T,2)}, v{RA+4} offset:{32*T}", tag="xt")
        p.waitlg("xt")
        for T in range(5):
            for k in range(2):
                p(f"v_lshlrev_b32 v{H+4*T+2*k}, 16, v{BB[0]+2*T+k}")
                p(f"v_and_b32 v{H+4*T+2*k+1}, 0xffff0000, v{BB[0]+2*T+k}")
        self.pump_setup()
        Lskip = p.newlabel("skipw1a")
        if self.w1_early:
            p(f"s_cmp_ge_u32 s{sI}, 30")
            p(f"s_cbranch_scc1 {Lskip}")
            self.pump_w1(0, self.w1_early)
            p.label(Lskip)
        self.stamp("w1a")
        p(f"s_lshr_b32 s{sT0}, s{sA4}, 1")
        p(f"s_lshl_b32 s{sT0}, s{sT0}, 7")
        p(f"s_add_u32 s{sT0}, s{sT0}, {WS_CB}")
        p(f"s_mul_i32 s{sT1}, s{sA4}, 20480")
        p(f"s_add_u32 s{sT1}, s{sT1}, {WS_O}")
        p(f"v_mov_b32 v{T2}, 0")
        p("s_waitcnt vmcnt(0)")
        p("s_barrier")
        self.poll(T2, sT0, 16, T1, "B")
        for ks in range(20):
            if ks % 4 == 0 and ks:
                p(f"s_add_u32 s{sT1}, s{sT1}, 4096")
            p(f"buffer_load_dwordx4 {vr(OF+4*ks,4)}, v{VL16}, {srd(SWS)}, s{sT1} offen offset:{1024*(ks%4)} sc1", tag=f"O{ks}")
        self.stamp("pollB")

        def b_reads(ks, buf):
            for T in range(5):
                for h in range(2):
                    if ks < 16:
                        hi = 1 if ks >= 8 else 0
                        a, off = RA + hi, (ks - 8 * hi) * 6400 + 3200 * h + 32 * T
                    else:
                        m = ks - 16
                        hi = 1 if m >= 2 else 0
                        a, off = RA + 2 + hi, (m - 2 * hi) * 25600 + 3200 * h + 32 * T
                    p(f"ds_read_b64_tr_b16 {vr(BB[buf]+4*T+2*h,2)}, v{a} offset:{off}", tag=f"B{ks}")

        b_reads(0, 0)
        for ks in range(20):
            if ks + 1 < 20:
                b_reads(ks + 1, (ks + 1) & 1)
            p.waitlg(f"B{ks}")
            p.waitvm(f"O{ks}")
            for T in range(5):
                p(f"{MF} {vr(H+4*T,4)}, {vr(OF+4*ks,4)}, {vr(BB[ks&1]+4*T,4)}, {vr(H+4*T,4)}")
        self.stamp("p2mm")
        S1, S2 = 44, 48
        p(f"s_lshl_b32 s{sT0}, s{sA4}, 10")
        p(f"s_add_u32 s{sT0}, s{sT0}, {WS_STAT}")
        p(f"s_lshl_b32 s{sT1}, s{sDJ}, 7")
        p(f"s_add_u32 s{sT1}, s{sT1}, s{sT0}")
        p(f"v_lshrrev_b32 v{T0}, 3, v1")
        p(f"v_lshlrev_b32 v{T0}, 4, v{T0}")
        p(f"v_and_b32 v{T1}, 7, v1")
        p(f"v_lshl_add_u32 v{T1}, v{T1}, 7, v{T0}")
        p(f"v_cmp_lt_u32 {sp(sM0)}, 7, v3")
        for k in (0, 2):
            p(f"v_pk_add_f32 {vr(S1+k,2)}, {vr(H+k,2)}, {vr(H+4+k,2)}")
            p(f"v_pk_mul_f32 {vr(S2+k,2)}, {vr(H+k,2)}, {vr(H+k,2)}")
        for T in range(1, 5):
            for k in (0, 2):
                if T > 1:
                    p(f"v_pk_add_f32 {vr(S1+k,2)}, {vr(S1+k,2)}, {vr(H+4*T+k,2)}")
                p(f"v_pk_fma_f32 {vr(S2+k,2)}, {vr(H+4*T+k,2)}, {vr(H+4*T+k,2)}, {vr(S2+k,2)}")
        DP = "row_mask:0xf bank_mask:0xf"
        for k in range(8):
            p(f"v_add_f32_dpp v{S1+k}, v{S1+k}, v{S1+k} row_ror:8 {DP}")
        Q = 52
        p(f"v_cndmask_b32 v{Q}, v{S1}, v{S1+2}, {sp(sM0)}")
        p(f"v_cndmask_b32 v{Q+1}, v{S2}, v{S2+2}, {sp(sM0)}")
        p(f"v_cndmask_b32 v{Q+2}, v{S1+1}, v{S1+3}, {sp(sM0)}")
        p(f"v_cndmask_b32 v{Q+3}, v{S2+1}, v{S2+3}, {sp(sM0)}")

        def red8(r):
            for mod in ("quad_perm:[1,0,3,2]", "quad_perm:[2,3,0,1]", "row_half_mirror"):
                for k in range(4):
                    p(f"v_add_f32_dpp v{r+k}, v{r+k}, v{r+k} {mod} {DP}")
        red8(Q)
        p("s_mov_b32 exec_lo, 0x01010101")
        p("s_mov_b32 exec_hi, 0x01010101")
        p(f"buffer_store_dwordx4 {vr(Q,4)}, v{T0}, {srd(SWS)}, s{sT1} offen sc1")
        p("s_mov_b64 exec, -1")
        HP = 146
        self.HP = HP
        for T in range(5):
            for k in range(2):
                p(f"v_cvt_pk_bf16_f32 v{HP+2*T+k}, v{H+4*T+2*k}, v{H+4*T+2*k+1}")
        p("s_waitcnt vmcnt(0)")
        self.stamp("ststore")
        L = p.newlabel("pollC")
        Ld = p.newlabel("polledC")
        R = 56
        p(f"s_mov_b32 s{sCNT}, 0")
        p.label(L)
        p(f"buffer_load_dwordx4 {vr(R,4)}, v{T1}, {srd(SWS)}, s{sT0} offen sc1")
        p(f"s_add_u32 s{sCNT}, s{sCNT}, 1")
        p("s_waitcnt vmcnt(0)")
        p(f"v_max_u32 v{T2}, v{R}, v{R+1}")
        p(f"v_max3_u32 v{T2}, v{T2}, v{R+2}, v{R+3}")
        p(f"v_cmp_eq_u32 vcc, -1, v{T2}")
        p(f"s_bitcmp1_b32 s{sCNT}, 19")
        p(f"s_cbranch_scc1 {Ld}")
        p(f"s_cbranch_vccnz {L}")
        p.label(Ld)
        self.stamp("pollC")
        red8(R)
        p(f"s_mov_b32 s{sT2}, {f2u(1.0/640)}")
        p(f"s_mov_b32 s{sT3}, {f2u(1e-5)}")
        for k in (0, 2):
            p(f"v_mul_f32 v{R+k}, s{sT2}, v{R+k}")
        for k in (0, 2):
            p(f"v_mul_f32 v{Q+k}, v{R+k}, v{R+k}")
        for k in (0, 2):
            p(f"v_fma_f32 v{R+k+1}, v{R+k+1}, s{sT2}, -v{Q+k}")
        for k in (0, 2):
            p(f"v_max_f32 v{R+k+1}, 0, v{R+k+1}")
        for k in (0, 2):
            p(f"v_add_f32 v{Q+k}, s{sT3}, v{R+k+1}")
        for k in (0, 2):
            p(f"v_rsq_f32 v{Q+k}, v{Q+k}")
        for k in (0, 2):
            p(f"v_mul_f32 v{R+k+1}, v{R+k+1}, v{Q+k}")
        for k in (0, 2):
            p(f"v_fma_f32 v{R+k+1}, v{R+k+1}, v{Q+k}, s{sT3}")
        for k in (0, 2):
            p(f"v_rsq_f32 v{R+k+1}, v{R+k+1}")
        for k in (0, 2):
            p(f"v_mul_f32 v{R+k+1}, v{R+k+1}, v{Q+k}")
        for k in (0, 2):
            p(f"v_mul_f32 v{R+k}, -v{R+k}, v{R+k+1}")
        for k in range(4):
            p(f"v_mov_b32_dpp v{Q+k}, v{R+k} row_ror:8 {DP}")
        MC, CC = 44, 48
        for r in range(2):
            p(f"v_cndmask_b32 v{MC+r}, v{R+2*r}, v{Q+2*r}, {sp(sM0)}")
            p(f"v_cndmask_b32 v{MC+2+r}, v{Q+2*r}, v{R+2*r}, {sp(sM0)}")
            p(f"v_cndmask_b32 v{CC+r}, v{R+2*r+1}, v{Q+2*r+1}, {sp(sM0)}")
            p(f"v_cndmask_b32 v{CC+2+r}, v{Q+2*r+1}, v{R+2*r+1}, {sp(sM0)}")
        p(f"s_mul_i32 s{sT0}, s{sDJ}, {5*65536}")
        p(f"s_lshl_b32 s{sT1}, s{sA4}, 9")
        p(f"s_add_u32 s{sT0}, s{sT0}, s{sT1}")
        p(f"s_add_u32 s{sT0}, s{sT0}, {WS_HN}")
        p(f"s_add_u32 s{sT1}, s{sT0}, {2*65536}")
        p(f"s_add_u32 s{sT2}, s{sT0}, {4*65536}")
        p(f"v_lshrrev_b32 v{T0}, 5, v1")
        p(f"v_mul_u32_u24 v{T0}, {65536-512}, v{T0}")
        p(f"v_add_u32 v{T0}, v{T0}, v{VL16}")
        PN = 60
        for T in range(5):
            for k in (0, 2):
                p(f"v_pk_fma_f32 {vr(H+4*T+k,2)}, {vr(H+4*T+k,2)}, {vr(CC+k,2)}, {vr(MC+k,2)}")
            for k in range(2):
                p(f"v_cvt_pk_bf16_f32 v{PN+2*T+k}, v{H+4*T+2*k}, v{H+4*T+2*k+1}")
            if T == 4:
                for k in range(2):
                    p(f"v_mov_b32 v{PN+10+k}, v{PN+8+k}")
            if T in (1, 3, 4):
                b = PN + 4 * (T // 2)
                p(f"v_permlane32_swap_b32 v{b}, v{b+2}")
                p(f"v_permlane32_swap_b32 v{b+1}, v{b+3}")
                if T == 4:
                    p("s_mov_b32 exec_hi, 0")
                p(f"buffer_store_dwordx4 {vr(b,4)}, v{T0}, {srd(SWS)}, s{sT0 + T//2} offen sc1", tag="HS")
                if T == 4:
                    p("s_mov_b32 exec_hi, -1")
        p(f"s_lshl_b32 s{sT0}, s{sDJ}, 2")
        p(f"s_lshr_b32 s{sT1}, s{sST}, 3")
        p(f"s_add_u32 s{sT0}, s{sT0}, s{sT1}")
        p(f"s_lshl_b32 s{sT0}, s{sT0}, 7")
        p(f"s_add_u32 s{sT0}, s{sT0}, {WS_CD}")
        self.stamp("hnstore")
        p("s_waitcnt vmcnt(0)")
        p("s_barrier")
        Ls = p.newlabel("nosigD")
        p(f"s_cmp_lg_u32 s{sW}, 0")
        p(f"s_cbranch_scc1 {Ls}")
        p("s_mov_b64 exec, 1", opt=True)
        p(f"buffer_atomic_add v{VONE}, off, {srd(SWS)}, s{sT0} sc1", opt=True)
        p("s_mov_b64 exec, -1", opt=True)
        p.label(Ls)
        self.stamp("sigD")

    def red_setup(self):
        p = self.p
        VL16 = self.VL16
        self.RW, self.RR = 16, 19
        for Tl in range(4):
            p(f"s_add_u32 s{sT0}, s{sW}, {Tl}")
            p(f"s_and_b32 s{sT0}, s{sT0}, 3")
            p(f"s_mul_i32 s{sT1}, s{sT0}, 3072")
            p(f"s_add_u32 s{sT1}, s{sT1}, {L_MISC}")
            p(f"s_cmp_eq_u32 s{sT0}, 3")
            p(f"s_cselect_b32 s{sT1}, 98304, s{sT1}")
            if Tl == 0:
                p(f"v_add_u32 v{self.RR}, s{sT1}, v{VL16}")
            else:
                p(f"s_add_u32 s{sT1}, s{sT1}, {1024*(Tl-1)}")
                p(f"v_add_u32 v{self.RW+Tl-1}, s{sT1}, v{VL16}")

    def reduce4(self, acc, tmp, first):
        p = self.p
        if not first:
            p("s_barrier")
        for Tl in range(1, 4):
            p(f"ds_write_b128 v{self.RW+Tl-1}, {vr(acc+4*Tl,4)}")
        p("s_waitcnt lgkmcnt(0)")
        p("s_barrier")
        for k in range(3):
            p(f"ds_read_b128 {vr(tmp+4*k,4)}, v{self.RR} offset:{1024*k}", tag=f"rr{k}")
        for k in range(3):
            p.waitlg(f"rr{k}")
            for j in (0, 2):
                p(f"v_pk_add_f32 {vr(acc+j,2)}, {vr(acc+j,2)}, {vr(tmp+4*k+j,2)}")

    def p34(self):
        p = self.p
        T0, T1, T2 = 21, 22, 23
        VL16, VONE, HP = self.VL16, self.VONE, self.HP
        ACC = 24
        TMP = 40
        BI = 52
        B2 = 56
        IDN = 58
        VA = 20
        PR2 = 60
        W2V = 64
        STG = 176 if not self.stamps else 172
        NS, PD = 16, 12
        p(f"s_and_b32 s{sROT}, s{sDJ}, 3")
        p(f"s_mul_i32 s{sROT}, s{sROT}, {self.rot4}")
        p(f"s_lshl_b32 s{sT0}, s{sFT}, 7")
        p(f"s_lshl_b32 s{sT1}, s{sW}, 5")
        p(f"s_add_u32 s{sT0}, s{sT0}, s{sT1}")
        p(f"s_cmp_ge_u32 s{sI}, 30")
        p(f"s_cselect_b32 s{sT0}, 0, s{sT0}")
        p(f"v_lshl_add_u32 v{T0}, v2, 3, s{sT0}")
        p(f"global_load_dwordx2 {vr(BI+2,2)}, v{T0}, {sp(SB1)}", tag="bias")
        p(f"s_lshl_b32 s{sT0}, s{sA4}, 5")
        p(f"v_lshl_add_u32 v{T1}, v3, 1, s{sT0}")
        p(f"global_load_ushort v{B2}, v{T1}, {sp(SB2)}", tag="bias")
        Lskip = p.newlabel("skipw1b")
        p(f"s_cmp_ge_u32 s{sI}, 30")
        p(f"s_cbranch_scc1 {Lskip}")
        self.pump_w1(self.w1_early, 16)
        p.label(Lskip)
        p("s_waitcnt vmcnt(0)")
        self.stamp("w1b")
        p(f"s_mul_i32 s{sA5}, s{sW}, 24576")
        for ks in range(3):
            p.extend(self.dma_w2(ks, f"s_add_u32 m0, s{sRING}, {4096*ks}"))
        for ks in range(6, 12):
            p.extend(self.dma_w2(ks, f"s_add_u32 m0, s{sA5}, {4096*(ks-6)}"))
        self.red_setup()
        p(f"s_sub_u32 s{sT0}, s{sA5}, s{sRING}")
        for Tl in range(4):
            p(f"v_add_u32 v{PR2+Tl}, s{sT0}, v{self.PR+Tl}")
        p(f"v_lshlrev_b32 v{BI}, 16, v{BI+2}")
        p(f"v_and_b32 v{BI+1}, 0xffff0000, v{BI+2}")
        p(f"v_lshlrev_b32 v{BI+2}, 16, v{BI+3}")
        p(f"v_and_b32 v{BI+3}, 0xffff0000, v{BI+3}")
        p(f"v_lshlrev_b32 v{B2}, 16, v{B2}")
        p(f"v_lshlrev_b32 v{T0}, 2, v2")
        p(f"v_sub_u32 v{T0}, v3, v{T0}")
        p(f"v_mov_b32 v{T1}, 0x3f80")
        p(f"v_mov_b32 v{T2}, 0x3f800000")
        for k in range(2):
            p(f"v_cmp_eq_u32 {sp(sM0)}, {2*k}, v{T0}")
            p(f"v_cmp_eq_u32 {sp(sM1)}, {2*k+1}, v{T0}")
            p(f"v_cndmask_b32 v{IDN+k}, 0, v{T1}, {sp(sM0)}")
            p(f"v_cndmask_b32 v{IDN+k}, v{IDN+k}, v{T2}, {sp(sM1)}")
        for ks in range(3):
            p.waitvm(f"w2_{ks}")
            p.extend(self.rd_slot(lambda k: vr(W2V + 16 * ks + k, 2), 4096 * ks, f"w2r_{ks}"))
        for ks in range(3):
            p.waitlg(f"w2r_{ks}")
            p.extend(self.dma_w2(3 + ks, f"s_add_u32 m0, s{sRING}, {4096*ks}"))
        self.stamp("w2iss")
        Lp4 = p.newlabel("p4")
        p(f"s_cmp_ge_u32 s{sI}, 30")
        p(f"s_cbranch_scc1 {Lp4}")
        p(f"s_lshl_b32 s{sT0}, s{sDT}, 2")
        p(f"v_and_b32 v{T0}, 1, v1")
        p(f"v_mul_u32_u24 v{T0}, 3, v{T0}")
        p(f"v_add_u32 v{T0}, s{sT0}, v{T0}")
        p(f"v_mul_u32_u24 v{T0}, 52, v{T0}")
        p(f"v_lshrrev_b32 v{T0}, 8, v{T0}")
        p(f"v_lshlrev_b32 v{T0}, 9, v{T0}")
        p(f"s_lshl_b32 s{sT1}, s{sW}, 7")
        p(f"s_add_u32 s{sT1}, s{sT1}, {WS_CD}")
        p(f"s_cmp_ge_u32 s{sDT}, 5")
        p(f"s_cselect_b32 s{sT2}, 5, 0")
        p(f"s_sub_u32 s{sT2}, s{sDT}, s{sT2}")
        for t in range(4):
            p(f"s_add_u32 s{sA0+t}, s{sT2}, {t}")
            p(f"s_and_b32 s{sA0+t}, s{sA0+t}, 3")
            p(f"s_add_u32 s{sA0+t}, s{sA0+t}, s{sT0}")
        self.poll(T0, sT1, 8, T1, "D")
        self.stamp("pollD")

        def h_load(n):
            t, ks = divmod(n, 16)
            if ks == 0:
                p(f"s_lshl_b32 s{sT0}, s{sA0+t}, 16")
                p(f"s_lshl_b32 s{sT1}, s{sW}, 14")
                p(f"s_add_u32 s{sT0}, s{sT0}, s{sT1}")
                p(f"s_add_u32 s{sT0}, s{sT0}, {WS_HN}")
                p(f"v_add_u32 v{VA}, s{sT0}, v{VL16}")
            p(f"buffer_load_dwordx4 {vr(STG+4*(n%NS),4)}, v{VA}, {srd(SWS)}, s{sTAB+ks} offen sc1", tag=f"H{n}")

        c1 = -2.0 * math.sqrt(2.0 / math.pi) * LOG2E
        c2 = c1 * 0.044715
        p(f"s_mov_b32 s{sC0}, {f2u(c2)}")
        p(f"s_mov_b32 s{sC0+1}, {f2u(c1)}")
        for n in range(PD):
            h_load(n)
        for n in range(64):
            t, ks = divmod(n, 16)
            p.waitvm(f"H{n}")
            for Tl in range(4):
                a = ACC + 4 * Tl
                p(f"{MF} {vr(a,4)}, {ar(16*ks+4*Tl,4)}, {vr(STG+4*(n%NS),4)}, {'0' if ks == 0 else vr(a,4)}")
                if Tl == 0 and n + PD < 64:
                    h_load(n + PD)
            if ks == 8 and t > 0:
                p.waitvm(f"US{t-1}")
                self.signal(sT4, VONE)
            if ks == 15:
                self.reduce4(ACC, TMP, t == 0)
                for j in (0, 2):
                    p(f"v_pk_add_f32 {vr(ACC+j,2)}, {vr(ACC+j,2)}, {vr(BI+j,2)}")
                for j in (0, 2):
                    p(f"v_pk_mul_f32 {vr(TMP+j,2)}, {vr(ACC+j,2)}, {vr(ACC+j,2)}")
                p(f"v_mov_b32 v{TMP+4}, s{sC0+1}")
                for j in range(4):
                    p(f"v_fma_f32 v{TMP+j}, v{TMP+j}, s{sC0}, v{TMP+4}")
                for j in (0, 2):
                    p(f"v_pk_mul_f32 {vr(TMP+j,2)}, {vr(TMP+j,2)}, {vr(ACC+j,2)}")
                for j in range(4):
                    p(f"v_exp_f32 v{TMP+j}, v{TMP+j}")
                for j in range(4):
                    p(f"v_add_f32 v{TMP+j}, 1.0, v{TMP+j}")
                for j in range(4):
                    p(f"v_rcp_f32 v{TMP+j}, v{TMP+j}")
                p(f"s_mul_i32 s{sT2}, s{sA0+t}, 49152")
                p(f"s_lshl_b32 s{sT3}, s{sFT}, 2")
                p(f"s_add_u32 s{sT3}, s{sT3}, s{sW}")
                p(f"s_lshl_b32 s{sT3}, s{sT3}, 9")
                p(f"s_add_u32 s{sT2}, s{sT2}, s{sT3}")
                p(f"s_add_u32 s{sT2}, s{sT2}, {WS_U}")
                p(f"s_lshl_b32 s{sT4}, s{sA0+t}, 2")
                p(f"s_lshr_b32 s{sT3}, s{sST}, 3")
                p(f"s_add_u32 s{sT4}, s{sT4}, s{sT3}")
                p(f"s_lshl_b32 s{sT4}, s{sT4}, 7")
                p(f"s_add_u32 s{sT4}, s{sT4}, {WS_CE}")
                for j in (0, 2):
                    p(f"v_pk_mul_f32 {vr(TMP+j,2)}, {vr(TMP+j,2)}, {vr(ACC+j,2)}")
                for u in range(2):
                    p(f"v_cvt_pk_bf16_f32 v{TMP+4+2*u}, v{TMP}, v{TMP+1}")
                    p(f"v_cvt_pk_bf16_f32 v{TMP+5+2*u}, v{TMP+2}, v{TMP+3}")
                p(f"v_permlane32_swap_b32 v{TMP+4}, v{TMP+6}")
                p(f"v_permlane32_swap_b32 v{TMP+5}, v{TMP+7}")
                p("s_mov_b32 exec_hi, 0")
                p(f"buffer_store_dwordx4 {vr(TMP+4,4)}, v{VL16}, {srd(SWS)}, s{sT2} offen sc1", tag=f"US{t}")
                p("s_mov_b32 exec_hi, -1")
                self.stamp(f"p3t{t}")
        p.waitvm("US3")
        self.signal(sT4, VONE)
        p.label(Lp4)
        p("s_waitcnt vmcnt(0)")
        for ks in range(3, 12):
            if ks < 6:
                p.extend(self.rd_slot(lambda k: ar(16 * (ks - 3) + k, 2), 4096 * (ks - 3), "w2f"))
            else:
                p.extend(self.rd_slot(lambda k: ar(16 * (ks - 3) + k, 2), 4096 * (ks - 6), "w2f", PR2))
        for ks in range(12):
            p(f"s_add_u32 s{sTAB+ks}, s{sROT}, {ks}")
            p(f"s_cmp_ge_u32 s{sTAB+ks}, 12")
            p(f"s_cselect_b32 s{sT5}, 12, 0")
            p(f"s_sub_u32 s{sTAB+ks}, s{sTAB+ks}, s{sT5}")
            p(f"s_lshl_b32 s{sTAB+ks}, s{sTAB+ks}, 10")
        p(f"v_and_b32 v{T0}, 7, v1")
        p(f"v_min_u32 v{T0}, 4, v{T0}")
        p(f"v_lshlrev_b32 v{T0}, 9, v{T0}")
        p(f"s_mul_i32 s{sT0}, s{sDJ}, {5*512}")
        p(f"s_lshl_b32 s{sT1}, s{sW}, 7")
        p(f"s_add_u32 s{sT0}, s{sT0}, s{sT1}")
        p(f"s_add_u32 s{sT0}, s{sT0}, {WS_CE}")
        p(f"s_mul_i32 s{sT2}, s{sDJ}, {5*49152}")
        p(f"s_mul_i32 s{sT1}, s{sW}, 12288")
        p(f"s_add_u32 s{sT2}, s{sT2}, s{sT1}")
        p(f"s_add_u32 s{sT2}, s{sT2}, {WS_U}")
        p(f"v_add_u32 v{VA}, s{sT2}, v{VL16}")
        self.poll(T0, sT0, 24, T1, "E")
        self.stamp("pollE")

        def u_load(n):
            t, ks = divmod(n, 12)
            if ks == 0 and t > 0:
                p(f"v_add_u32 v{VA}, 49152, v{VA}")
            p(f"buffer_load_dwordx4 {vr(STG+4*(n%NS),4)}, v{VA}, {srd(SWS)}, s{sTAB+ks} offen sc1", tag=f"U{n}")

        for n in range(PD):
            u_load(n)
        p(f"v_mul_u32_u24 v{T0}, 1280, v3")
        p(f"v_lshl_add_u32 v{T0}, v2, 3, v{T0}")
        p(f"s_mul_i32 s{sT0}, s{sA4}, {16*1280}")
        p(f"s_mul_i32 s{sT1}, s{sDJ}, 160")
        p(f"s_add_u32 s{sT0}, s{sT0}, s{sT1}")
        p("s_waitcnt lgkmcnt(0)")
        wop = lambda ks, Tl: vr(W2V + 16 * ks + 4 * Tl, 4) if ks < 3 else ar(16 * (ks - 3) + 4 * Tl, 4)
        for n in range(60):
            t, ks = divmod(n, 12)
            if ks == 0:
                p(f"{MF16} {vr(ACC,4)}, {vr(HP+2*t,2)}, {vr(IDN,2)}, 0")
            p.waitvm(f"U{n}")
            for Tl in (1, 2, 3, 0):
                a = ACC + 4 * Tl
                p(f"{MF} {vr(a,4)}, {vr(STG+4*(n%NS),4)}, {wop(ks,Tl)}, {'0' if ks == 0 and Tl else vr(a,4)}")
                if Tl == 1 and n + PD < 60:
                    u_load(n + PD)
            if ks == 11:
                self.reduce4(ACC, TMP, False)
                for j in (0, 2):
                    p(f"v_pk_add_f32 {vr(ACC+j,2)}, {vr(ACC+j,2)}, {vr(B2,2)} op_sel_hi:[1,0]")
                p(f"v_cvt_pk_bf16_f32 v{TMP}, v{ACC}, v{ACC+1}")
                p(f"v_cvt_pk_bf16_f32 v{TMP+1}, v{ACC+2}, v{ACC+3}")
                p(f"buffer_store_dwordx2 {vr(TMP,2)}, v{T0}, {srd(SOUT)}, s{sT0} offen offset:{32*t}")
                self.stamp(f"p4t{t}")

    def finish(self):
        p = self.p
        p.label("L_fin")
        if self.stamps:
            p("s_waitcnt vmcnt(0)")
            self.stamp("end")
            p("s_lshl_b32 s46, s2, 2")
            p(f"s_add_u32 s46, s46, s{sW}")
            p("s_lshl_b32 s46, s46, 8")
            p(f"s_add_u32 s46, s46, {WS_TS}")
            p("v_lshlrev_b32 v21, 2, v1")
            p(f"buffer_store_dword v255, v21, {srd(SWS)}, s46 offen")
        p.label("L_end")
        p("s_endpgm")

    def build(self):
        self.prologue()
        self.p1()
        if self.stop != "p1":
            self.p2()
            if self.stop != "p2":
                self.p34()
        self.finish()
        body, out = finalize(self.p, verbose=False)
        self.out = out
        return body


HEAD = """; Fused persistent kernel: LN -> QKV -> linear attention -> out-proj -> LN -> token-mixing MLP
; @launch grid=(256,1,1) block=(256,1,1) lds=163840
.amdgcn_target "amdgcn-amd-amdhsa--gfx950"
.text
.globl {name}
.p2align 8
.type {name},@function
{name}:
"""
TAIL = """
.section .rodata,"a"
.p2align 6
.amdhsa_kernel {name}
  .amdhsa_next_free_vgpr 512
  .amdhsa_next_free_sgpr 102
  .amdhsa_accum_offset 256
  .amdhsa_group_segment_fixed_size 0
  .amdhsa_kernarg_size 88
  .amdhsa_user_sgpr_count 2
  .amdhsa_user_sgpr_kernarg_segment_ptr 1
  .amdhsa_system_sgpr_workgroup_id_x 1
.end_amdhsa_kernel
"""


def make(**kw):
    g = Gen(**kw)
    body = g.build()
    return HEAD.format(name=KNAME) + body + TAIL.format(name=KNAME), g


if __name__ == "__main__":
    txt, g = make()
    n = sum(1 for x in g.out if x.kind == "ins")
    print("instructions", n, "nops", sum(1 for x in g.out if x.kind == "ins" and x.mn == "s_nop"))
    for pr in check_pending(g.out):
        print("PENDING", pr)
    open(sys.argv[1] if len(sys.argv) > 1 else "k1.s", "w").write(txt)
```
